```python
import torch

def _softmax(x, axis=-1):
    return torch.softmax(x, dim=axis)
def _gelu(x):
    return torch.nn.functional.gelu(x, approximate="tanh")
def _silu(x):
    return torch.nn.functional.silu(x)
def _sigmoid(x):
    return torch.sigmoid(x)
def _layernorm(x, axis=-1, eps=1e-5):
    m = x.mean(dim=axis, keepdim=True)
    v = x.var(dim=axis, keepdim=True, unbiased=False)
    return (x - m) / torch.sqrt(v + eps)
def _scatter_add(tgt, idx, src, axis=0):
    return tgt.clone().index_add_(axis, idx, src)
def _segment_sum(src, seg, n):
    out = torch.zeros((n,) + src.shape[1:], dtype=src.dtype)
    return out.index_add_(0, seg, src)
def _pad(x, pw):
    flat = tuple(v for pair in reversed(pw) for v in pair)
    return torch.nn.functional.pad(x, flat)

kernel_name = 'gated_mix__gqa_block_cached__glu_gated_reglu__decode'

def setup_inputs():

    _w = (lambda a: (lambda t: t.to(torch.bfloat16) if t.is_floating_point() else t)(torch.as_tensor(a)))
    def _A_setup():
        B, Sq, D = 8, 1, 640
        Hq, Hkv, Sk, Dh = 32, 32, 4096, 128
        assert Hq % Hkv == 0, (Hq, Hkv)
        return {
            "x": _w((lambda *s: torch.randn(*s, dtype=torch.bfloat16) * 0.05)(B, Sq, D)),
            "k_cache": _w((lambda *s: torch.randn(*s, dtype=torch.bfloat16) * 3.2)(B, Hkv, Sk, Dh)),
            "v_cache": _w((lambda *s: torch.randn(*s, dtype=torch.bfloat16) * 0.05)(B, Hkv, Sk, Dh)),
            "wq": _w((lambda *s: torch.randn(*s, dtype=torch.bfloat16) * 3.2)(D, Hq * Dh) * (D ** -0.5)),
            "wo": _w((lambda *s: torch.randn(*s, dtype=torch.bfloat16) * 0.05)(Hq * Dh, D) * ((Hq * Dh) ** -0.5)),
        }
    _A_in = _A_setup()

    def _B_setup():
        B, S, D, F = 8, 1, 640, 1728
        return {
            "x": _w((lambda *s: torch.randn(*s, dtype=torch.bfloat16) * 0.05)(B, S, D)),
            "W_gate": _w((lambda *s: torch.randn(*s, dtype=torch.bfloat16) * 0.2)(D, F) * (2.0 / D) ** 0.5),
            "W_up": _w((lambda *s: torch.randn(*s, dtype=torch.bfloat16) * 0.2)(D, F) * (2.0 / D) ** 0.5),
            "W_down": _w((lambda *s: torch.randn(*s, dtype=torch.bfloat16) * 0.2)(F, D) * (1.0 / F) ** 0.5),
        }
    _B_in = _B_setup()

    return {
        "A_x": _A_in["x"],
        "A_k_cache": _A_in["k_cache"],
        "A_v_cache": _A_in["v_cache"],
        "A_wq": _A_in["wq"],
        "A_wo": _A_in["wo"],
        "B_x": _B_in["x"],
        "B_W_gate": _B_in["W_gate"],
        "B_W_up": _B_in["W_up"],
        "B_W_down": _B_in["W_down"],
        "gate_w": _w((lambda *s: torch.randn(*s, dtype=torch.bfloat16) * 0.05)(640) * 16.0),
    }

def reference(A_x, A_k_cache, A_v_cache, A_wq, A_wo, B_x, B_W_gate, B_W_up, B_W_down, gate_w):
    def _A_ref(x, k_cache, v_cache, wq, wo):
        B, Sq, D = x.shape
        Hq, Dh = 32, 128
        Hkv = k_cache.shape[1]
        rep = Hq // Hkv
        q = (lambda x, *d: x.permute(*d))((x @ wq).reshape(B, Sq, Hq, Dh), 0, 2, 1, 3)
        k = (lambda x, n, axis: torch.repeat_interleave(x, n, dim=axis))(k_cache, rep, axis=1)
        v = (lambda x, n, axis: torch.repeat_interleave(x, n, dim=axis))(v_cache, rep, axis=1)
        scores = torch.einsum("bhqd,bhkd->bhqk", q, k) * (Dh ** -0.5)
        p = _softmax(scores, axis=-1)
        o = torch.einsum("bhqk,bhkd->bhqd", p, v)
        return (lambda x, *d: x.permute(*d))(o, 0, 2, 1, 3).reshape(B, Sq, Hq * Dh) @ wo

    def _B_ref(x, W_gate, W_up, W_down):
        gate = torch.einsum("bsd,df->bsf", x, W_gate)
        up = torch.einsum("bsd,df->bsf", x, W_up)
        gate = gate * (lambda x, dt: x.to(dt))(gate > 0, gate.dtype)
        h = gate * up
        return torch.einsum("bsf,fd->bsd", h, W_down)

    x = A_x
    g = _sigmoid((x * gate_w).sum(-1, keepdims=True))
    a = _A_ref(x, A_k_cache, A_v_cache, A_wq, A_wo)
    b = _B_ref(x, B_W_gate, B_W_up, B_W_down)
    return g * a + (1 - g) * b
```

```python
import re

REG_RE = re.compile(r'^-?\|?(?:abs\()?([vsa])(?:(\d+)|\[(\d+):(\d+)\])\)?\|?$')

def regs_of(tok):
    tok = tok.strip()
    if tok in ('vcc',): return {('s', 'vcc_lo'), ('s', 'vcc_hi')}
    if tok in ('vcc_lo', 'vcc_hi', 'm0', 'exec_lo', 'exec_hi'): return {('s', tok)}
    if tok == 'exec': return {('s', 'exec_lo'), ('s', 'exec_hi')}
    m = REG_RE.match(tok)
    if not m: return set()
    k = m.group(1)
    if m.group(2) is not None: return {(k, int(m.group(2)))}
    return {(k, i) for i in range(int(m.group(3)), int(m.group(4)) + 1)}

TRANS = ('v_exp_f32', 'v_log_f32', 'v_rcp_f32', 'v_rsq_f32', 'v_sqrt_f32', 'v_sin_f32', 'v_cos_f32', 'v_rcp_iflag_f32')

class Ins:
    def __init__(self, text):
        self.text = text
        t = text.split(';')[0].strip()
        self.kind = 'other'
        self.op = ''
        self.w = set(); self.r = set()
        self.label = None
        if not t: self.kind = 'empty'; return
        if t.endswith(':'): self.kind = 'label'; self.label = t[:-1]; return
        if t.startswith('.'): self.kind = 'dir'; return
        parts = t.split(None, 1)
        op = parts[0]; self.op = op
        rest = parts[1] if len(parts) > 1 else ''
        toks = []; depth = 0; cur = ''
        for ch in rest:
            if ch == '[': depth += 1
            if ch == ']': depth -= 1
            if ch == ',' and depth == 0: toks.append(cur); cur = ''
            else: cur += ch
        if cur.strip(): toks.append(cur)
        ops = []
        mods = ''
        for i, tk in enumerate(toks):
            tk = tk.strip()
            if i == len(toks) - 1:
                sp = tk.split(None, 1)
                ops.append(sp[0]); mods = sp[1] if len(sp) > 1 else ''
            else: ops.append(tk)
        self.ops = ops; self.mods = mods
        R = [regs_of(x) for x in ops]
        allr = lambda lst: set().union(*lst) if lst else set()
        self.dpp = ('_dpp' in op) or ('row_' in mods) or ('quad_perm' in rest)
        if op.startswith('v_mfma'):
            self.kind = 'mfma'; self.w = R[0]; self.r = allr(R[1:]); self.srcc = R[3]; self.srcab = R[1] | R[2]
            self.passes = 8 if '32x32' in op else 4
        elif op.startswith('v_'):
            self.kind = 'valu'
            base = op.replace('_e32', '').replace('_e64', '').replace('_dpp', '')
            self.base = base
            if base.startswith('v_cmpx'):
                self.w = R[0] | regs_of('exec'); self.r = allr(R[1:])
            elif base.startswith('v_cmp'):
                self.w = R[0]; self.r = allr(R[1:])
            elif base in ('v_add_co_u32', 'v_sub_co_u32', 'v_subrev_co_u32'):
                self.w = R[0] | R[1]; self.r = allr(R[2:])
            elif base in ('v_addc_co_u32', 'v_subb_co_u32'):
                self.w = R[0] | R[1]; self.r = allr(R[2:])
            elif base.startswith('v_permlane') and 'swap' in base:
                self.w = R[0] | R[1]; self.r = R[0] | R[1]
            elif base in ('v_fmac_f32', 'v_dot2c_f32_bf16', 'v_writelane_b32'):
                self.w = R[0]; self.r = allr(R)
            else:
                self.w = R[0]; self.r = allr(R[1:])
                if self.dpp: self.r |= R[0]
            if base == 'v_cndmask_b32' and len(ops) == 3: self.r |= regs_of('vcc')
        elif op.startswith('ds_'):
            self.kind = 'ds'
            if op.startswith('ds_read') or '_rtn' in op or op.startswith('ds_bpermute') or op.startswith('ds_permute') or op.startswith('ds_swizzle'):
                self.w = R[0]; self.r = allr(R[1:])
            else: self.r = allr(R)
        elif op.startswith('buffer_') or op.startswith('global_'):
            self.kind = 'vmem'
            self.lds = bool(re.search(r'\blds\b', mods)) or 'load_lds' in op
            if op in ('buffer_inv', 'buffer_wbl2'): pass
            elif 'load' in op:
                if self.lds: self.r = allr(R) | {('s', 'm0')}
                else: self.w = R[0]; self.r = allr(R[1:])
            elif 'store' in op:
                self.r = allr(R)
                self.data = R[0] if op.startswith('buffer_') else R[1]
                self.wide = ('x3' in op) or ('x4' in op)
            elif 'atomic' in op:
                self.r = allr(R)
                if 'sc0' in mods: self.w = R[0]
        elif op.startswith('s_'):
            self.kind = 'salu'
            if op == 's_nop': self.kind = 'nop'; self.n = int(ops[0], 0) + 1
            elif op.startswith(('s_cmp', 's_waitcnt', 's_barrier', 's_sleep', 's_setprio', 's_endpgm', 's_branch', 's_cbranch')):
                self.r = allr(R)
                if op.startswith(('s_branch', 's_cbranch')): self.kind = 'branch'; self.target = ops[0]
            elif op.startswith(('s_load', 's_memtime', 's_memrealtime', 's_buffer_load')):
                self.kind = 'smem'; self.w = R[0]; self.r = allr(R[1:])
            else:
                self.w = R[0]; self.r = allr(R[1:])
                if 'saveexec' in op: self.w |= regs_of('exec'); self.r |= regs_of('exec')
    def ws(self):
        if self.kind == 'nop': return self.n
        if self.kind in ('label', 'dir', 'empty'): return 0
        return 1

def need(p, c):
    n = 0
    vw = {x for x in p.w if x[0] in 'va'}
    sw = {x for x in p.w if x[0] == 's'}
    if p.kind == 'valu':
        if vw & c.r:
            if c.kind == 'mfma': n = max(n, 2)
            if c.kind == 'valu':
                if c.dpp: n = max(n, 2)
                if c.base in ('v_readlane_b32', 'v_readfirstlane_b32'): n = max(n, 1)
                if c.base.startswith('v_permlane'): n = max(n, 2)
                if p.base in TRANS and c.base not in TRANS: n = max(n, 1)
            if p.base in TRANS and c.kind in ('vmem', 'ds'): n = max(n, 1)
        if sw & c.r:
            if c.kind == 'valu':
                n = max(n, 2)
                if c.base in ('v_readlane_b32', 'v_writelane_b32'): n = max(n, 4)
            if c.kind == 'vmem': n = max(n, 5)
            if c.kind in ('salu', 'branch', 'smem'): n = max(n, 1)
        if ('s', 'exec_lo') in sw or ('s', 'exec_hi') in sw:
            if c.kind == 'valu' and c.dpp: n = max(n, 5)
            if c.kind == 'mfma': n = max(n, 4)
            if c.kind == 'valu' and (c.base.startswith('v_permlane') or c.base.startswith('v_read')): n = max(n, 4)
    if p.kind == 'mfma':
        big = {4: 8, 8: 12}[p.passes]; ovl = {4: 6, 8: 10}[p.passes]
        if c.kind == 'mfma':
            if p.w & c.srcab: n = max(n, big)
            if p.w & c.srcc:
                if not (p.w == c.srcc and p.passes == c.passes): n = max(n, ovl)
            if p.w & c.w and not (p.w & c.srcc): n = max(n, big)
        elif c.kind in ('valu', 'vmem', 'ds'):
            if p.w & (c.r | c.w): n = max(n, big)
        if c.kind == 'valu' and (p.srcc & c.w): n = max(n, {4: 3, 8: 7}[p.passes])
    if p.kind == 'salu' and ('s', 'm0') in p.w:
        if c.kind == 'vmem' and getattr(c, 'lds', False): n = max(n, 1)
    if p.kind == 'vmem' and getattr(p, 'wide', False):
        if c.kind == 'valu' and (p.data & c.w): n = max(n, 2)
        elif c.kind in ('ds', 'vmem') and (p.data & c.w): n = max(n, 1)
    return n

WINDOW = 24

def fix_linear(ins):
    out = []
    nfix = 0
    for c in ins:
        if c.kind not in ('label', 'dir', 'empty'):
            req = 0; dist = 0
            for p in reversed(out[-WINDOW * 2:]):
                if p.kind in ('label', 'dir', 'empty'): continue
                if p.kind == 'branch' and p.op == 's_branch': break
                if p.op == 's_endpgm': break
                nd = need(p, c)
                if nd > dist: req = max(req, nd - dist)
                dist += p.ws()
                if dist >= 20: break
            while req > 0:
                k = min(req, 16)
                out.append(Ins(f"s_nop {k-1}")); req -= k; nfix += 1
        out.append(c)
    return out, nfix

def check_edges(ins):
    real = [i for i in ins if i.kind not in ('dir', 'empty')]
    lab = {i.label: k for k, i in enumerate(real) if i.kind == 'label'}
    errs = []
    for k, b in enumerate(real):
        if b.kind != 'branch': continue
        if b.target not in lab: errs.append(f"unknown label {b.target}"); continue
        prev = []; d = 0
        for p in reversed(real[:k + 1]):
            if p.kind == 'label': continue
            prev.append(p); d += p.ws()
            if d >= 20: break
        d2 = 0
        for c in real[lab[b.target]:]:
            if c.kind == 'label': continue
            dist = d2
            for p in prev:
                nd = need(p, c)
                if nd > dist: errs.append(f"edge hazard: '{p.text.strip()}' -> (branch {b.target}) -> '{c.text.strip()}' needs {nd} has {dist}")
                dist += p.ws()
            d2 += c.ws()
            if d2 >= 20 or c.op in ('s_branch', 's_endpgm'): break
    return errs

class Asm:
    def __init__(self): self.lines = []
    def __call__(self, s):
        for l in s.split('\n'):
            l = l.strip()
            if l: self.lines.append(l)
    def label(self, n): self.lines.append(n + ':')
    def c(self, s): self.lines.append('; ' + s)
    def finish(self):
        ins = [Ins(l) if not l.startswith(';') else Ins('') for l in self.lines]
        for i, l in zip(ins, self.lines): i.text = l
        fixed, n = fix_linear(ins)
        errs = check_edges(fixed)
        if errs:
            for e in errs: print("HAZARD:", e)
            raise SystemExit("edge hazards")
        return [i.text for i in fixed], n
```

```python
import sys, math, struct
sys.path.insert(0, "tools")
from asmlib import Asm

KN = "gated_mix__gqa_block_cached__glu_gated_reglu__decode_kernel"

def f2u(x): return struct.unpack("<I", struct.pack("<f", x))[0]

SLOT = 16384; NSLOT = 8
CTL = SLOT * NSLOT
O_LANDED = 0
O_NEXT = 16
O_QCNT = 32
O_QRDY = 36
O_GUCNT = 40
O_LAST = 44
O_QPART = 256
O_QBF = O_QPART + 2048
O_GUPART = O_QBF + 256
O_APART = O_GUPART + 2048
O_YPART = O_APART + 3072
O_END = O_YPART + 10240 + 1024
LDS_BYTES = CTL + O_END
YSTRIDE = 4096

NT = 128
NCONS = 3
C1 = math.log2(math.e) / math.sqrt(128.0)
LOG2E = math.log2(math.e)

HEADER = open("gated_mix__gqa_block_cached__glu_gated_reglu__decode.s.ref").read().split("; Override launch")[0]

def gen(N=20, wflags="nt", kvflags="nt", gu_batch=8, stamps=False, spin_sleep=1):
    a = Asm()
    NG = N // 4
    assert N % 4 == 0 and 4 <= NG <= 15
    TO = 0x40000
    uid = [0]
    def L(n): uid[0] += 1; return f"L_{n}_{uid[0]}"

    def lds_wait_ge(vaddr, off, sneed, vtmp, stmp, sto, sleep=spin_sleep, signed=True):
        l0 = L("spin"); l1 = L("spun")
        a(f"s_mov_b32 {sto}, {TO}")
        a.label(l0)
        a(f"ds_read_b32 {vtmp}, {vaddr} offset:{off}")
        a("s_waitcnt lgkmcnt(0)")
        a(f"v_readfirstlane_b32 {stmp}, {vtmp}")
        a(f"s_cmp_ge_i32 {stmp}, {sneed}")
        a(f"s_cbranch_scc1 {l1}")
        if sleep: a(f"s_sleep {sleep}")
        a(f"s_sub_u32 {sto}, {sto}, 1")
        a(f"s_cmp_lg_u32 {sto}, 0")
        a(f"s_cbranch_scc1 {l0}")
        a.label(l1)

    def stamp(idx, stmp0=96):
        if not stamps: return
        a(f"s_memrealtime s[{stmp0}:{stmp0+1}]")
        a("s_waitcnt lgkmcnt(0)")
        a(f"v_mov_b32 v252, s{stmp0}")
        a(f"v_mov_b32 v253, {idx*4}")
        a("s_mov_b64 s[98:99], exec")
        a("s_mov_b64 exec, 1")
        a("buffer_store_dword v252, v253, s[92:95], 0 offen")
        a("s_mov_b64 exec, s[98:99]")

    def masks(vbase, vlane, vt0, vt1):
        a(f"v_and_b32 {vt0}, 15, {vlane}")
        a(f"v_and_b32 {vt1}, 1, {vlane}")
        a(f"v_sub_u32 {vt1}, 0, {vt1}")
        a(f"v_xor_b32 {vt1}, 0xffff, {vt1}")
        a(f"v_lshrrev_b32 {vt0}, 1, {vt0}")
        for r in range(4):
            a(f"v_cmp_eq_u32 vcc, {r}, {vt0}")
            a(f"v_cndmask_b32 v{vbase+r}, 0, {vt1}, vcc")

    a.label(KN)
    a("s_cmp_ge_u32 s2, 256")
    a("s_cbranch_scc1 L_end")
    a("s_load_dwordx4 s[4:7], s[0:1], 8")
    a("v_lshrrev_b32 v1, 6, v0")
    a("v_and_b32 v0, 63, v0")
    a("s_and_b32 s16, s2, 7")
    a("s_lshl_b32 s16, s16, 2")
    a("s_bfe_u32 s3, s2, 0x20003")
    a("v_readfirstlane_b32 s19, v1")
    a("s_add_u32 s16, s16, s3")
    a("s_lshr_b32 s17, s2, 5")
    a("s_lshl_b32 s18, s17, 5")
    a("s_add_u32 s18, s18, s16")
    if stamps:
        a("s_load_dwordx2 s[92:93], s[0:1], 96")
        a("s_waitcnt lgkmcnt(0)")
        a("s_lshl_b32 s94, s2, 8")
        a("s_add_u32 s92, s92, s94"); a("s_addc_u32 s93, s93, 0")
        a("s_add_u32 s92, s92, 0x400000"); a("s_addc_u32 s93, s93, 0")
        a("s_mov_b32 s94, 256"); a("s_mov_b32 s95, 0x20000")
    a("s_cmp_lg_u32 s19, 0")
    a("s_cbranch_scc1 L_notloader")

    a.c("==== loader wave: K/V stream, LDS-DMA ring")
    a("s_setprio 3")
    stamp(0)
    a("v_lshrrev_b32 v8, 4, v0")
    a("v_and_b32 v9, 15, v0")
    for m in range(4):
        a(f"v_add_u32 v10, {4*m}, v8")
        a("v_xor_b32 v10, v10, v9")
        a("v_lshlrev_b32 v10, 4, v10")
        a(f"v_lshl_add_u32 v{2+m}, v8, 8, v10")
    a("v_lshlrev_b32 v6, 4, v0")
    a(f"v_mov_b32 v7, {CTL}")
    a(f"v_mov_b32 v8, {4 - NG}")
    a("s_lshr_b32 s20, s18, 12")
    a("s_lshl_b32 s21, s18, 20")
    a("s_mov_b32 s10, 0x100000"); a("s_mov_b32 s11, 0x20000")
    a("s_mov_b32 s14, 0x100000"); a("s_mov_b32 s15, 0x20000")
    a("s_waitcnt lgkmcnt(0)")
    a("s_add_u32 s8, s4, s21"); a("s_addc_u32 s9, s5, s20")
    a("s_add_u32 s12, s6, s21"); a("s_addc_u32 s13, s7, s20")
    def group(grp, sgo, sslot):
        srd = "s[8:11]" if grp < 2 else "s[12:15]"
        a(f"s_add_u32 m0, {sslot}, {grp*4096}")
        a(f"s_add_u32 s24, {sgo}, {(grp&1)*4096}")
        for m in range(4):
            vo = f"v{2+m}" if grp < 2 else "v6"
            a(f"buffer_load_dwordx4 {vo}, {srd}, s24 offen offset:{m*1024} {kvflags} lds")
    a("s_mov_b32 s22, 0"); a("s_mov_b32 s23, 0")
    for grp in range(4): group(grp, "s22", "s23")
    a("s_barrier")
    a("ds_read_b128 v[12:15], v7 offset:%d" % O_NEXT)
    a("s_mov_b32 s25, 1")
    a("s_mov_b32 s22, 8192"); a(f"s_mov_b32 s23, {SLOT}")
    a.label("L_ld_loop")
    a("s_waitcnt lgkmcnt(0)")
    a("v_min3_u32 v9, v12, v13, v14")
    a("v_readfirstlane_b32 s26, v9")
    a("s_add_u32 s26, s26, 7")
    a("s_cmp_ge_u32 s26, s25")
    a("s_cbranch_scc1 L_ld_free")
    a(f"s_mov_b32 s27, {TO}")
    a.label("L_ld_spin")
    a("s_sleep 1")
    a("ds_read_b128 v[12:15], v7 offset:%d" % O_NEXT)
    a("s_waitcnt lgkmcnt(0)")
    a("v_min3_u32 v9, v12, v13, v14")
    a("v_readfirstlane_b32 s26, v9")
    a("s_add_u32 s26, s26, 7")
    a("s_cmp_ge_u32 s26, s25")
    a("s_cbranch_scc1 L_ld_free")
    a("s_sub_u32 s27, s27, 1")
    a("s_cmp_lg_u32 s27, 0")
    a("s_cbranch_scc1 L_ld_spin")
    a.label("L_ld_free")
    for grp in range(4):
        a(f"s_waitcnt vmcnt({N-4})")
        group(grp, "s22", "s23")
        a("v_add_u32 v8, 1, v8")
        a(f"ds_write_b32 v7, v8 offset:{O_LANDED}")
        if grp == 2: a("ds_read_b128 v[12:15], v7 offset:%d" % O_NEXT)
    a("s_add_u32 s22, s22, 8192")
    a(f"s_add_u32 s23, s23, {SLOT}")
    a(f"s_and_b32 s23, s23, {SLOT*NSLOT-1}")
    a("s_add_u32 s25, s25, 1")
    a(f"s_cmp_lt_u32 s25, {NT}")
    a("s_cbranch_scc1 L_ld_loop")
    for k in range(NG):
        a(f"s_waitcnt vmcnt({4*(NG-1-k)})")
        a("v_add_u32 v8, 1, v8")
        a(f"ds_write_b32 v7, v8 offset:{O_LANDED}")
    stamp(1)
    a("s_setprio 0")
    a("s_branch L_join")

    a.label("L_notloader")
    a("s_cmp_ge_u32 s19, 4")
    a("s_cbranch_scc1 L_side")

    a.c("==== consumer waves")
    Q = 16; KD = 32; VD = 64; AO = 96; S = 128; O = 136; MK = 140; KA = 144; KC = 148
    VA, VC, MS, LS, AL, T0, T1, CT = 152, 153, 154, 155, 156, 157, 158, 159
    a("s_sub_u32 s20, s19, 1")
    a(f"v_mov_b32 v{CT}, {CTL}")
    masks(MK, "v0", f"v{T0}", f"v{T1}")
    a(f"v_lshrrev_b32 v1, 4, v0")
    a(f"v_and_b32 v2, 15, v0")
    for r in range(4):
        a(f"v_add_u32 v3, {4*r}, v1")
        a("v_xor_b32 v3, v3, v2")
        a("v_lshlrev_b32 v3, 4, v3")
        a(f"v_lshl_add_u32 v{KA+r}, v2, 8, v3")
    a("v_lshlrev_b32 v3, 4, v2")
    a(f"v_lshl_add_u32 v{VA}, v1, 10, v3")
    a(f"v_lshl_add_u32 v4, v1, 4, v{CT}")
    a(f"v_mov_b32 v{MS}, 0xff7fffff")
    a(f"v_mov_b32 v{LS}, 0")
    for r in range(4): a(f"v_mov_b32 v{O+r}, 0")
    a(f"s_mov_b32 s21, {f2u(C1):#x}")
    a("s_barrier")
    lds_wait_ge(f"v{CT}", O_QRDY, "1", f"v{T0}", "s26", "s27")
    for r in range(4):
        a(f"ds_read_b128 v[{Q+4*r}:{Q+4*r+3}], v4 offset:{O_QBF + 64*r}")
    a("s_mov_b32 s22, s20")
    a("s_mov_b32 s28, -1")
    a.label("L_c_loop")
    a("s_and_b32 s23, s22, %d" % (NSLOT-1))
    a("s_lshl_b32 s23, s23, 14")
    a("s_lshl_b32 s24, s22, 2")
    a("s_add_u32 s24, s24, 2")
    for r in range(4): a(f"v_add_u32 v{KC+r}, s23, v{KA+r}")
    a(f"v_add_u32 v{VC}, s23, v{VA}")
    a("s_cmp_ge_i32 s28, s24")
    a("s_cbranch_scc1 L_c_kok")
    lds_wait_ge(f"v{CT}", O_LANDED, "s24", f"v{T0}", "s28", "s27")
    a.label("L_c_kok")
    for u in range(2):
        for r in range(4):
            d = KD + (u*4+r)*4
            a(f"ds_read_b128 v[{d}:{d+3}], v{KC+r} offset:{u*4096}")
    for u in range(2):
        for r in range(4):
            d = KD + (u*4+r)*4
            a(f"s_waitcnt lgkmcnt({7-(u*4+r)})")
            c = "0" if r == 0 else f"v[{S+4*u}:{S+4*u+3}]"
            a(f"v_mfma_f32_16x16x32_bf16 v[{S+4*u}:{S+4*u+3}], v[{d}:{d+3}], v[{Q+4*r}:{Q+4*r+3}], {c}")
    a("s_add_u32 s24, s24, 2")
    a(f"v_max3_f32 v{T0}, v{S}, v{S+1}, v{S+2}")
    a(f"v_max3_f32 v{T1}, v{S+3}, v{S+4}, v{S+5}")
    a(f"v_max3_f32 v{T0}, v{T0}, v{S+6}, v{S+7}")
    a(f"v_max_f32 v{T0}, v{T0}, v{T1}")
    a(f"v_mul_f32 v{T0}, s21, v{T0}")
    a(f"v_max_f32 v{T0}, v{T0}, v{MS}")
    a(f"v_max_f32_dpp v{T0}, v{T0}, v{T0} row_bcast:15 row_mask:0xa bank_mask:0xf")
    a(f"v_max_f32_dpp v{T0}, v{T0}, v{T0} row_bcast:31 row_mask:0xc bank_mask:0xf")
    a(f"v_readlane_b32 s29, v{T0}, 63")
    a(f"v_subrev_f32 v{AL}, s29, v{MS}")
    a(f"v_mov_b32 v{MS}, s29")
    a(f"v_exp_f32 v{AL}, v{AL}")
    for k in range(8): a(f"v_fma_f32 v{S+k}, v{S+k}, s21, -v{MS}")
    for k in range(8): a(f"v_exp_f32 v{S+k}, v{S+k}")
    a(f"v_mul_f32 v{LS}, v{LS}, v{AL}")
    for r in range(4): a(f"v_mul_f32 v{O+r}, v{O+r}, v{AL}")
    for k in range(8):
        a(f"v_cvt_pk_bf16_f32 v{T1}, v{S+k}, v{S+k}")
        a(f"v_add_f32 v{LS}, v{LS}, v{S+k}")
        for r in range(4): a(f"v_and_b32 v{AO+4*k+r}, v{T1}, v{MK+r}")
    a("s_cmp_ge_i32 s28, s24")
    a("s_cbranch_scc1 L_c_vok")
    lds_wait_ge(f"v{CT}", O_LANDED, "s24", f"v{T0}", "s28", "s27")
    a.label("L_c_vok")
    for k in range(8):
        u, r = k >> 2, k & 3
        d = VD + 4*k
        a(f"ds_read_b128 v[{d}:{d+3}], v{VC} offset:{8192 + u*4096 + r*256}")
    a("s_add_u32 s22, s22, %d" % NCONS)
    a(f"v_mov_b32 v{T0}, s22")
    for k in range(8):
        d = VD + 4*k
        a(f"s_waitcnt lgkmcnt({7-k})")
        if k == 7:
            a("s_lshl_b32 s23, s20, 2")
            a(f"v_add_u32 v{T1}, s23, v{CT}")
            a(f"ds_write_b32 v{T1}, v{T0} offset:{O_NEXT}")
        a(f"v_mfma_f32_16x16x32_bf16 v[{O}:{O+3}], v[{AO+4*k}:{AO+4*k+3}], v[{d}:{d+3}], v[{O}:{O+3}]")
    a(f"s_cmp_lt_u32 s22, {NT}")
    a("s_cbranch_scc1 L_c_loop")
    a(f"v_add_f32_dpp v{LS}, v{LS}, v{LS} row_bcast:15 row_mask:0xa bank_mask:0xf")
    a(f"v_add_f32_dpp v{LS}, v{LS}, v{LS} row_bcast:31 row_mask:0xc bank_mask:0xf")
    a(f"v_readlane_b32 s29, v{LS}, 63")
    a("s_lshl_b32 s23, s20, 10")
    a("v_lshrrev_b32 v1, 4, v0"); a("v_and_b32 v2, 15, v0")
    a("v_lshlrev_b32 v1, 4, v1"); a("v_lshl_add_u32 v1, v2, 5, v1")
    a(f"v_add_u32 v1, s23, v1"); a(f"v_add_u32 v1, v1, v{CT}")
    a(f"v_add_u32 v2, s23, v{CT}")
    a(f"v_mov_b32 v{MS+1}, s29")
    a("s_mov_b32 exec_hi, 0")
    a(f"ds_write_b128 v1, v[{O}:{O+3}] offset:{O_APART}")
    a("s_mov_b32 exec_lo, 1")
    a(f"ds_write_b64 v2, v[{MS}:{MS+1}] offset:{O_APART + 512}")
    a("s_mov_b64 exec, -1")
    stamp(2)
    a("s_branch L_join")

    a.label("L_side")
    a.c("==== side waves: q projection, gate, FFN, output projection")
    MKs = 4; A0 = 8; A1 = 52; Y = 12; X = 32; QA = 56; W = 64
    VAD = 60; VO = 62; VT0, VT1, VT2, VT3 = 224, 225, 226, 227; CTs = 228; VG = 229; VG1 = 230
    a("s_sub_u32 s20, s19, 4")
    a("s_load_dwordx2 s[44:45], s[0:1], 0")
    a("s_load_dwordx4 s[24:27], s[0:1], 24")
    a("s_load_dwordx4 s[28:31], s[0:1], 48")
    a("s_load_dwordx4 s[32:35], s[0:1], 64")
    a(f"v_mov_b32 v{CTs}, {CTL}")
    a("v_lshrrev_b32 v1, 4, v0")
    a("v_and_b32 v2, 15, v0")
    a("s_cmp_lg_u32 s20, 0")
    a("s_cbranch_scc1 L_s_noinit")
    a("v_mov_b32 v8, 0"); a("v_mov_b32 v9, 0"); a("v_mov_b32 v10, 0"); a("v_mov_b32 v11, 0")
    a(f"ds_write_b128 v{CTs}, v[8:11] offset:0")
    a(f"ds_write_b128 v{CTs}, v[8:11] offset:32")
    a("v_mov_b32 v9, 1"); a("v_mov_b32 v10, 2"); a("v_mov_b32 v11, 0x7fffffff")
    a(f"ds_write_b128 v{CTs}, v[8:11] offset:{O_NEXT}")
    a.label("L_s_noinit")
    a("s_mul_i32 s21, s20, 320")
    a(f"v_lshl_add_u32 v3, v1, 3, s21")
    a("s_mul_i32 s21, s20, 160")
    a(f"v_lshl_add_u32 v{VO}, v1, 2, s21")
    a(f"v_lshlrev_b32 v{VT0}, 13, v{VO}")
    a(f"v_lshl_add_u32 v{VT0}, v2, 4, v{VT0}")
    a("s_waitcnt lgkmcnt(0)")
    a("s_mul_i32 s21, s17, 1280")
    a("s_add_u32 s4, s44, s21"); a("s_addc_u32 s5, s45, 0"); a("s_mov_b32 s6, 1280"); a("s_mov_b32 s7, 0x20000")
    a("s_lshl_b32 s21, s16, 8")
    a("s_add_u32 s8, s24, s21"); a("s_addc_u32 s9, s25, 0")
    a(f"s_sub_u32 s10, {640*8192}, s21"); a("s_mov_b32 s11, 0x20000")
    for k in range(10):
        a(f"buffer_load_dwordx2 v[{X+2*k}:{X+2*k+1}], v3, s[4:7], 0 offen offset:{32*k}")
    for k in range(10):
        for r in range(4):
            n = 4*k + r
            a(f"s_mov_b32 s21, {(16*k + r)*8192}")
            a(f"buffer_load_dwordx4 v[{W+4*n}:{W+4*n+3}], v{VT0}, s[8:11], s21 offen {wflags}")
    a("s_barrier")
    masks(MKs, "v0", f"v{VT1}", f"v{VT2}")
    a("s_mov_b32 s36, 0x01000100"); a("s_mov_b32 s37, 0x03020302")
    a("s_waitcnt vmcnt(40)")
    def gemv_steps(nblk, acc, first_zero, waitfn):
        for k in range(nblk):
            for r in range(4):
                n = 4*k + r
                A = A0 if n % 2 == 0 else A1
                xs = X + 2*k + (r >> 1)
                a(f"v_perm_b32 v{VT1}, v{xs}, v{xs}, s{36 + (r & 1)}")
                for q in range(4): a(f"v_and_b32 v{A+q}, v{VT1}, v{MKs+q}")
                waitfn(n)
                c = "0" if (n == 0 and first_zero) else f"v[{acc}:{acc+3}]"
                a(f"v_mfma_f32_16x16x32_bf16 v[{acc}:{acc+3}], v[{A}:{A+3}], v[{W+4*n}:{W+4*n+3}], {c}")
    gemv_steps(10, QA, True, lambda n: a(f"s_waitcnt vmcnt({39-n})"))
    a("v_lshlrev_b32 v3, 4, v1"); a("v_lshl_add_u32 v3, v2, 5, v3")
    a("s_lshl_b32 s21, s20, 9")
    a(f"v_add3_u32 v{VT2}, v3, s21, v{CTs}")
    a("s_mov_b32 exec_hi, 0")
    a(f"ds_write_b128 v{VT2}, v[{QA}:{QA+3}] offset:{O_QPART}")
    a("s_mov_b64 exec, -1")
    a(f"v_mov_b32 v{VT1}, 1")
    a("s_waitcnt lgkmcnt(0)")
    a("s_mov_b64 exec, 1")
    a(f"ds_add_rtn_u32 v{VT1}, v{CTs}, v{VT1} offset:{O_QCNT}")
    a("s_mov_b64 exec, -1")
    a("s_waitcnt lgkmcnt(0)")
    a(f"v_readfirstlane_b32 s21, v{VT1}")
    a("s_cmp_lg_u32 s21, 3")
    a("s_cbranch_scc1 L_s_qdone")
    a(f"v_lshl_add_u32 v{VT2}, v0, 3, v{CTs}")
    for c in range(4):
        a(f"ds_read_b64 v[{W+2*c}:{W+2*c+1}], v{VT2} offset:{O_QPART + 512*c}")
    a("s_waitcnt lgkmcnt(0)")
    a(f"v_add_f32 v{W}, v{W}, v{W+2}"); a(f"v_add_f32 v{W+1}, v{W+1}, v{W+3}")
    a(f"v_add_f32 v{W+4}, v{W+4}, v{W+6}"); a(f"v_add_f32 v{W+5}, v{W+5}, v{W+7}")
    a(f"v_add_f32 v{W}, v{W}, v{W+4}"); a(f"v_add_f32 v{W+1}, v{W+1}, v{W+5}")
    a(f"v_cvt_pk_bf16_f32 v{W}, v{W}, v{W+1}")
    a(f"v_lshl_add_u32 v{VT2}, v0, 2, v{CTs}")
    a(f"ds_write_b32 v{VT2}, v{W} offset:{O_QBF}")
    a(f"v_mov_b32 v{VT1}, 1")
    a("s_waitcnt lgkmcnt(0)")
    a(f"ds_write_b32 v{CTs}, v{VT1} offset:{O_QRDY}")
    a.label("L_s_qdone")
    stamp(3)
    a("s_mov_b32 s8, s34"); a("s_mov_b32 s9, s35"); a("s_mov_b32 s10, 1280"); a("s_mov_b32 s11, 0x20000")
    a("v_lshlrev_b32 v3, 4, v0")
    a(f"buffer_load_dwordx4 v[{W}:{W+3}], v3, s[4:7], 0 offen")
    a(f"buffer_load_dwordx4 v[{W+4}:{W+7}], v3, s[4:7], 0 offen offset:1024")
    a(f"buffer_load_dwordx4 v[{W+8}:{W+11}], v3, s[8:11], 0 offen")
    a(f"buffer_load_dwordx4 v[{W+12}:{W+15}], v3, s[8:11], 0 offen offset:1024")
    a(f"v_mov_b32 v{VG}, 0")
    a("s_waitcnt vmcnt(0)")
    for k in range(8):
        xs, wsr = W + k, W + 8 + k
        a(f"v_lshlrev_b32 v{VT0}, 16, v{xs}"); a(f"v_lshlrev_b32 v{VT1}, 16, v{wsr}")
        a(f"v_and_b32 v{VT2}, 0xffff0000, v{xs}"); a(f"v_and_b32 v{VT3}, 0xffff0000, v{wsr}")
        a(f"v_mul_f32 v{VT0}, v{VT0}, v{VT1}"); a(f"v_mul_f32 v{VT2}, v{VT2}, v{VT3}")
        a(f"v_cvt_pk_bf16_f32 v{VT0}, v{VT0}, v{VT2}")
        a(f"v_lshlrev_b32 v{VT1}, 16, v{VT0}"); a(f"v_and_b32 v{VT2}, 0xffff0000, v{VT0}")
        a(f"v_add_f32 v{VG}, v{VG}, v{VT1}"); a(f"v_add_f32 v{VG}, v{VG}, v{VT2}")
    for sh in (1, 2, 4, 8):
        a(f"v_add_f32_dpp v{VG}, v{VG}, v{VG} row_ror:{sh} row_mask:0xf bank_mask:0xf")
    a(f"v_add_f32_dpp v{VG}, v{VG}, v{VG} row_bcast:15 row_mask:0xa bank_mask:0xf")
    a(f"v_add_f32_dpp v{VG}, v{VG}, v{VG} row_bcast:31 row_mask:0xc bank_mask:0xf")
    a(f"v_readlane_b32 s21, v{VG}, 63")
    a(f"v_mov_b32 v{VG}, s21")
    a(f"v_cvt_pk_bf16_f32 v{VG}, v{VG}, v{VG}")
    a(f"v_and_b32 v{VG}, 0xffff0000, v{VG}")
    a(f"v_mul_f32 v{VG}, {f2u(-LOG2E):#x}, v{VG}")
    a(f"v_exp_f32 v{VG}, v{VG}")
    a(f"v_add_f32 v{VG}, 1.0, v{VG}")
    a(f"v_rcp_f32 v{VG}, v{VG}")
    a(f"v_cvt_pk_bf16_f32 v{VG}, v{VG}, v{VG}")
    a(f"v_and_b32 v{VG}, 0xffff0000, v{VG}")
    a(f"v_sub_f32 v{VG1}, 1.0, v{VG}")
    a(f"v_cvt_pk_bf16_f32 v{VG1}, v{VG1}, v{VG1}")
    a(f"v_and_b32 v{VG1}, 0xffff0000, v{VG1}")
    for r in range(20): a(f"v_mov_b32 v{Y+r}, 0")
    a("s_cmp_ge_u32 s16, 27")
    a("s_cbranch_scc1 L_s_noffn")
    a("v_cmp_gt_u32 vcc, 8, v2")
    a(f"v_mov_b32 v{VT0}, s30"); a(f"v_mov_b32 v{VT1}, s28")
    a(f"v_cndmask_b32 v{VAD}, v{VT0}, v{VT1}, vcc")
    a(f"v_mov_b32 v{VT0}, s31"); a(f"v_mov_b32 v{VT1}, s29")
    a(f"v_cndmask_b32 v{VAD+1}, v{VT0}, v{VT1}, vcc")
    a("s_movk_i32 s21, 3456")
    a(f"v_mul_lo_u32 v{VT0}, v{VO}, s21")
    a(f"v_and_b32 v{VT1}, 7, v2")
    a(f"v_lshl_add_u32 v{VT0}, v{VT1}, 4, v{VT0}")
    a("s_lshl_b32 s21, s16, 7")
    a(f"v_add_u32 v{VT0}, s21, v{VT0}")
    a(f"v_mov_b32 v{VT1}, 0")
    a(f"v_lshl_add_u64 v[{VAD}:{VAD+1}], v[{VT0}:{VT1}], 0, v[{VAD}:{VAD+1}]")
    a("s_mov_b32 s38, 6912"); a("s_mov_b32 s39, 0"); a(f"s_mov_b32 s40, {14*3456}"); a("s_mov_b32 s41, 0")
    nb = gu_batch
    assert 40 % nb == 0 and nb % 4 == 0
    def gu_issue(n):
        k, r = n >> 2, n & 3
        a(f"global_load_dwordx4 v[{W+4*n}:{W+4*n+3}], v[{VAD}:{VAD+1}], off offset:{(r&1)*3456} {wflags}")
        if r == 1: a(f"v_lshl_add_u64 v[{VAD}:{VAD+1}], v[{VAD}:{VAD+1}], 0, s[38:39]")
        if r == 3 and n != 39: a(f"v_lshl_add_u64 v[{VAD}:{VAD+1}], v[{VAD}:{VAD+1}], 0, s[40:41]")
    for n in range(nb): gu_issue(n)
    def gu_wait(n):
        if n % nb == 0:
            for m in range(n + nb, min(40, n + 2*nb)): gu_issue(m)
        issued = min(40, (n // nb + 2) * nb)
        a(f"s_waitcnt vmcnt({issued - 1 - n})")
    gemv_steps(10, QA, True, gu_wait)
    a("v_lshlrev_b32 v3, 4, v1"); a("v_lshl_add_u32 v3, v2, 5, v3")
    a("s_lshl_b32 s21, s20, 9")
    a(f"v_add3_u32 v{VT2}, v3, s21, v{CTs}")
    a("s_mov_b32 exec_hi, 0")
    a(f"ds_write_b128 v{VT2}, v[{QA}:{QA+3}] offset:{O_GUPART}")
    a("s_mov_b64 exec, -1")
    a(f"v_mov_b32 v{VT1}, 1")
    a("s_waitcnt lgkmcnt(0)")
    a("s_mov_b64 exec, 1")
    a(f"ds_add_u32 v{CTs}, v{VT1} offset:{O_GUCNT}")
    a("s_mov_b64 exec, -1")
    a("s_mov_b32 s8, s32"); a("s_mov_b32 s9, s33"); a(f"s_mov_b32 s10, {1728*1280}"); a("s_mov_b32 s11, 0x20000")
    a("s_lshl_b32 s21, s20, 4")
    a(f"v_lshl_add_u32 v{VT0}, v1, 2, s21")
    a("s_movk_i32 s21, 1280")
    a(f"v_mul_lo_u32 v{VO}, v{VT0}, s21")
    a(f"v_lshl_add_u32 v{VO}, v2, 4, v{VO}")
    a(f"s_mul_i32 s22, s16, {64*1280}")
    for r in range(4):
        a(f"s_add_u32 s21, s22, {r*1280}")
        for cb in range(5):
            n = 5*r + cb
            a(f"buffer_load_dwordx4 v[{W+4*n}:{W+4*n+3}], v{VO}, s[8:11], s21 offen offset:{cb*256} {wflags}")
    lds_wait_ge(f"v{CTs}", O_GUCNT, "4", f"v{VT1}", "s43", "s42")
    a(f"v_lshl_add_u32 v{VT0}, v{VT0}, 2, v{CTs}")
    G0 = 160
    for c in range(4):
        a(f"ds_read_b128 v[{G0+8*c}:{G0+8*c+3}], v{VT0} offset:{O_GUPART + 512*c}")
        a(f"ds_read_b128 v[{G0+8*c+4}:{G0+8*c+7}], v{VT0} offset:{O_GUPART + 512*c + 256}")
    a("s_waitcnt lgkmcnt(0)")
    for e in range(8):
        a(f"v_add_f32 v{G0+e}, v{G0+e}, v{G0+8+e}")
        a(f"v_add_f32 v{G0+16+e}, v{G0+16+e}, v{G0+24+e}")
    for e in range(8): a(f"v_add_f32 v{G0+e}, v{G0+e}, v{G0+16+e}")
    for r in range(4):
        gt, up = G0 + r, G0 + 4 + r
        a(f"v_cvt_pk_bf16_f32 v{VT1}, v{gt}, v{up}")
        a(f"v_lshlrev_b32 v{gt}, 16, v{VT1}")
        a(f"v_and_b32 v{up}, 0xffff0000, v{VT1}")
        a(f"v_max_f32 v{gt}, 0, v{gt}")
        a(f"v_mul_f32 v{gt}, v{gt}, v{up}")
        a(f"v_cvt_pk_bf16_f32 v{gt}, v{gt}, v{gt}")
        a(f"v_and_b32 v{gt}, 0xffff0000, v{gt}")
        a(f"v_mul_f32 v{gt}, v{gt}, v{VG1}")
    for r in range(4):
        A = A0 if r % 2 == 0 else A1
        a(f"v_cvt_pk_bf16_f32 v{VT1}, v{G0+r}, v{G0+r}")
        for q in range(4): a(f"v_and_b32 v{A+q}, v{VT1}, v{MKs+q}")
        for cb in range(5):
            n = 5*r + cb
            a(f"s_waitcnt vmcnt({19-n})")
            a(f"v_mfma_f32_16x16x32_bf16 v[{Y+4*cb}:{Y+4*cb+3}], v[{A}:{A+3}], v[{W+4*n}:{W+4*n+3}], v[{Y+4*cb}:{Y+4*cb+3}]")
    a.label("L_s_noffn")
    a("s_mov_b32 s8, s26"); a("s_mov_b32 s9, s27"); a(f"s_mov_b32 s10, {4096*1280}"); a("s_mov_b32 s11, 0x20000")
    a("s_lshl_b32 s21, s20, 5")
    a(f"v_lshl_add_u32 v{VT0}, v1, 2, s21")
    a("s_movk_i32 s21, 1280")
    a(f"v_mul_lo_u32 v{VO}, v{VT0}, s21")
    a(f"v_lshl_add_u32 v{VO}, v2, 4, v{VO}")
    a(f"s_mul_i32 s22, s16, {128*1280}")
    for k in range(2):
        for r in range(4):
            a(f"s_add_u32 s21, s22, {(16*k + r)*1280}")
            for cb in range(5):
                n = (4*k + r)*5 + cb
                a(f"buffer_load_dwordx4 v[{W+4*n}:{W+4*n+3}], v{VO}, s[8:11], s21 offen offset:{cb*256} {wflags}")
            if r % 2 == 1: a("s_waitcnt vmcnt(0)")
    stamp(4)
    a("s_barrier")
    a(f"v_lshl_add_u32 v{VT0}, v{VT0}, 2, v{CTs}")
    M0r = 232
    for c in range(3):
        a(f"ds_read_b64 v[{M0r+2*c}:{M0r+2*c+1}], v{CTs} offset:{O_APART + 1024*c + 512}")
    OP = 32
    for c in range(3):
        for k in range(2):
            d = OP + (c*2 + k)*4
            if d + 3 < A1:
                pass
            a(f"ds_read_b128 v[{d}:{d+3}], v{VT0} offset:{O_APART + 1024*c + 64*k}")
    a("s_waitcnt lgkmcnt(6)")
    a(f"v_max3_f32 v{VT1}, v{M0r}, v{M0r+2}, v{M0r+4}")
    for c in range(3): a(f"v_sub_f32 v{M0r+2*c}, v{M0r+2*c}, v{VT1}")
    for c in range(3): a(f"v_exp_f32 v{M0r+2*c}, v{M0r+2*c}")
    a(f"v_mul_f32 v{VT1}, v{M0r}, v{M0r+1}")
    a(f"v_fma_f32 v{VT1}, v{M0r+2}, v{M0r+3}, v{VT1}")
    a(f"v_fma_f32 v{VT1}, v{M0r+4}, v{M0r+5}, v{VT1}")
    a(f"v_rcp_f32 v{VT1}, v{VT1}")
    a(f"v_mul_f32 v{VT1}, v{VT1}, v{VG}")
    for c in range(3): a(f"v_mul_f32 v{M0r+2*c}, v{M0r+2*c}, v{VT1}")
    a("s_waitcnt lgkmcnt(0)")
    OV = 240
    for k in range(2):
        for r in range(4):
            e = OV + 4*k + r
            a(f"v_mul_f32 v{e}, v{OP + k*4 + r}, v{M0r}")
            a(f"v_fma_f32 v{e}, v{OP + (2+k)*4 + r}, v{M0r+2}, v{e}")
            a(f"v_fma_f32 v{e}, v{OP + (4+k)*4 + r}, v{M0r+4}, v{e}")
    AA = [32, 36, 40, 44]
    for k in range(2):
        for r in range(4):
            n0 = 4*k + r
            A = AA[n0 % 4]
            a(f"v_cvt_pk_bf16_f32 v{VT1}, v{OV+n0}, v{OV+n0}")
            for q in range(4): a(f"v_and_b32 v{A+q}, v{VT1}, v{MKs+q}")
            for cb in range(5):
                n = n0*5 + cb
                a(f"v_mfma_f32_16x16x32_bf16 v[{Y+4*cb}:{Y+4*cb+3}], v[{A}:{A+3}], v[{W+4*n}:{W+4*n+3}], v[{Y+4*cb}:{Y+4*cb+3}]")
    a("v_lshlrev_b32 v3, 4, v1"); a("v_lshl_add_u32 v3, v2, 5, v3")
    a("s_mul_i32 s21, s20, 2560")
    a(f"v_add3_u32 v{VT2}, v3, s21, v{CTs}")
    a("s_mov_b32 exec_hi, 0")
    for cb in range(5):
        a(f"ds_write_b128 v{VT2}, v[{Y+4*cb}:{Y+4*cb+3}] offset:{O_YPART + 512*cb}")
    a("s_mov_b64 exec, -1")
    a("s_waitcnt lgkmcnt(0)")
    a("s_barrier")
    a("s_cmp_lg_u32 s20, 0")
    a("s_cbranch_scc1 L_join4")
    a("s_load_dwordx2 s[8:9], s[0:1], 96")
    a("s_load_dwordx2 s[12:13], s[0:1], 88")
    a(f"v_lshl_add_u32 v{VT2}, v0, 4, v{CTs}")
    R0 = 64
    for q in range(3):
        for c in range(4):
            d = R0 + (q*4 + c)*4
            a(f"ds_read_b128 v[{d}:{d+3}], v{VT2} offset:{O_YPART + 2560*c + 1024*q}")
    a("s_waitcnt lgkmcnt(0)")
    a(f"s_mul_i32 s21, s18, {YSTRIDE}")
    a("s_add_u32 s8, s8, s21"); a("s_addc_u32 s9, s9, 0"); a("s_mov_b32 s10, 2560"); a("s_mov_b32 s11, 0x20000")
    a("s_mov_b32 s14, 256"); a("s_mov_b32 s15, 0x20000")
    a("v_lshlrev_b32 v3, 4, v0")
    for q in range(3):
        d = R0 + q*16
        for e in range(4):
            a(f"v_add_f32 v{d+e}, v{d+e}, v{d+4+e}")
            a(f"v_add_f32 v{d+8+e}, v{d+8+e}, v{d+12+e}")
        for e in range(4): a(f"v_add_f32 v{d+e}, v{d+e}, v{d+8+e}")
        a(f"buffer_store_dwordx4 v[{d}:{d+3}], v3, s[8:11], 0 offen offset:{1024*q} sc1")
    a("s_lshl_b32 s21, s17, 2")
    a(f"v_mov_b32 v{VT0}, s21"); a(f"v_mov_b32 v{VT1}, 1")
    a("s_waitcnt vmcnt(0)")
    a("s_mov_b64 exec, 1")
    a(f"buffer_atomic_add v{VT1}, v{VT0}, s[12:15], 0 offen sc0")
    a("s_waitcnt vmcnt(0)")
    a(f"ds_write_b32 v{CTs}, v{VT1} offset:{O_LAST}")
    a("s_mov_b64 exec, -1")
    a("s_waitcnt lgkmcnt(0)")
    a("s_branch L_join4")

    a.label("L_join")
    a("s_waitcnt lgkmcnt(0)")
    a("s_barrier")
    a("s_barrier")
    a.label("L_join4")
    a("s_barrier")
    a(f"v_mov_b32 v1, {CTL}")
    a(f"ds_read_b32 v2, v1 offset:{O_LAST}")
    a("s_waitcnt lgkmcnt(0)")
    a("v_readfirstlane_b32 s21, v2")
    stamp(5)
    a("s_cmp_lg_u32 s21, 31")
    a("s_cbranch_scc1 L_end")
    a("s_cmp_ge_u32 s19, 5")
    a("s_cbranch_scc1 L_end")
    a("s_load_dwordx2 s[8:9], s[0:1], 96")
    a("s_load_dwordx2 s[12:13], s[0:1], 80")
    a("v_lshrrev_b32 v1, 5, v0"); a("v_and_b32 v2, 31, v0")
    a("v_lshlrev_b32 v1, 12, v1"); a("v_lshl_add_u32 v1, v2, 4, v1")
    a("s_lshl_b32 s21, s19, 9")
    a("v_add_u32 v1, s21, v1")
    a("s_waitcnt lgkmcnt(0)")
    a(f"s_mul_i32 s21, s17, {32*YSTRIDE}")
    a("s_add_u32 s8, s8, s21"); a("s_addc_u32 s9, s9, 0"); a(f"s_mov_b32 s10, {32*YSTRIDE}"); a("s_mov_b32 s11, 0x20000")
    a("s_mul_i32 s21, s17, 1280")
    a("s_add_u32 s12, s12, s21"); a("s_addc_u32 s13, s13, 0"); a("s_mov_b32 s14, 1280"); a("s_mov_b32 s15, 0x20000")
    for n in range(16):
        a(f"s_mov_b32 s21, {n*2*YSTRIDE}")
        a(f"buffer_load_dwordx4 v[{16+4*n}:{16+4*n+3}], v1, s[8:11], s21 offen sc1")
    for n in range(1, 16):
        a(f"s_waitcnt vmcnt({15-n})")
        for e in range(4): a(f"v_add_f32 v{16+e}, v{16+e}, v{16+4*n+e}")
    for e in range(4): a(f"v_mov_b32 v{20+e}, v{16+e}")
    for e in range(4): a(f"v_permlane32_swap_b32 v{20+e}, v{16+e}")
    for e in range(4): a(f"v_add_f32 v{16+e}, v{16+e}, v{20+e}")
    a("v_cvt_pk_bf16_f32 v16, v16, v17")
    a("v_cvt_pk_bf16_f32 v17, v18, v19")
    a("s_lshl_b32 s21, s19, 8")
    a("v_lshl_add_u32 v1, v2, 3, s21")
    a("s_mov_b32 exec_hi, 0")
    a("buffer_store_dwordx2 v[16:17], v1, s[12:15], 0 offen")
    a.label("L_end")
    a("s_endpgm")

    lines, nfix = a.finish()
    out = []
    out.append(HEADER.rstrip("\n"))
    out.append("; Override launch geometry by editing the next line (default: block=256,")
    out.append(f"; @launch grid=(256,1,1) block=(512,1,1) lds={LDS_BYTES}")
    out.append('.amdgcn_target "amdgcn-amd-amdhsa--gfx950"')
    out.append(".text"); out.append(f".globl {KN}"); out.append(".p2align 8"); out.append(f".type {KN},@function")
    out += [l if (l.endswith(":") or l.startswith(";")) else "    " + l for l in lines]
    out.append('.section .rodata,"a"'); out.append(".p2align 6"); out.append(f".amdhsa_kernel {KN}")
    out.append("  .amdhsa_next_free_vgpr 256"); out.append("  .amdhsa_next_free_sgpr 102"); out.append("  .amdhsa_accum_offset 256")
    out.append("  .amdhsa_group_segment_fixed_size 0"); out.append("  .amdhsa_kernarg_size 104"); out.append("  .amdhsa_user_sgpr_count 2")
    out.append("  .amdhsa_user_sgpr_kernarg_segment_ptr 1"); out.append("  .amdhsa_system_sgpr_workgroup_id_x 1"); out.append(".end_amdhsa_kernel")
    return "\n".join(out) + "\n", nfix

if __name__ == "__main__":
    kw = eval("dict(%s)" % (sys.argv[2] if len(sys.argv) > 2 else ""))
    s, n = gen(**kw)
    open(sys.argv[1], "w").write(s)
    print("nops inserted:", n, "bytes:", len(s))
```

```python
import sys, math, struct
sys.path.insert(0, "tools")
from asmlib import Asm

KN = "gated_mix__gqa_block_cached__glu_gated_reglu__decode_kernel"

def f2u(x): return struct.unpack("<I", struct.pack("<f", x))[0]

SLOT = 16384; NSLOT = 9
CTL = SLOT * NSLOT
O_LANDED = 0
O_NEXT = 16
O_QCNT = 32
O_QRDY = 36
O_GUCNT = 40
O_LAST = 44
O_QPART = 256
O_QBF = O_QPART + 2048
O_GUPART = O_QBF + 256
O_APART = O_GUPART + 2048
O_END = O_APART + 3072
YPART = 0
LDS_BYTES = CTL + O_END
YSTRIDE = 4096

NT = 128
NCONS = 3
C1 = math.log2(math.e) / math.sqrt(128.0)
LOG2E = math.log2(math.e)

HEADER = open("gated_mix__gqa_block_cached__glu_gated_reglu__decode.s.ref").read().split("; Override launch")[0]

def gen(levels=(20, 24, 16), th=(192, -192), period=12, adapt=True, wflags="nt", kvflags="nt", swq=4, swf=3, rot=True, rotf=False, preload=True, arr=4*123, static_red=None, sched=None, stamps=False, spin_sleep=1):
    a = Asm()
    for n in levels: assert n % 4 == 0 and 16 <= n <= 60
    O_G = 32
    TO = 0x40000
    uid = [0]
    def L(n): uid[0] += 1; return f"L_{n}_{uid[0]}"

    def lds_wait_ge(vaddr, off, sneed, vtmp, stmp, sto, sleep=spin_sleep, signed=True):
        l0 = L("spin"); l1 = L("spun")
        a(f"s_mov_b32 {sto}, {TO}")
        a.label(l0)
        a(f"ds_read_b32 {vtmp}, {vaddr} offset:{off}")
        a("s_waitcnt lgkmcnt(0)")
        a(f"v_readfirstlane_b32 {stmp}, {vtmp}")
        a(f"s_cmp_ge_i32 {stmp}, {sneed}")
        a(f"s_cbranch_scc1 {l1}")
        if sleep: a(f"s_sleep {sleep}")
        a(f"s_sub_u32 {sto}, {sto}, 1")
        a(f"s_cmp_lg_u32 {sto}, 0")
        a(f"s_cbranch_scc1 {l0}")
        a.label(l1)

    def stamp(idx, stmp0=96):
        if not stamps: return
        a(f"s_memrealtime s[{stmp0}:{stmp0+1}]")
        a("s_waitcnt lgkmcnt(0)")
        a(f"v_mov_b32 v252, s{stmp0}")
        a(f"v_mov_b32 v253, {idx*4}")
        a("s_mov_b64 s[98:99], exec")
        a("s_mov_b64 exec, 1")
        a("buffer_store_dword v252, v253, s[92:95], 0 offen")
        a("s_mov_b64 exec, s[98:99]")

    def stamp_s(sidx4, stmp0=96):
        if not stamps: return
        a(f"s_memrealtime s[{stmp0}:{stmp0+1}]")
        a("s_waitcnt lgkmcnt(0)")
        a(f"v_mov_b32 v252, s{stmp0}")
        a(f"v_mov_b32 v253, {sidx4}")
        a("s_mov_b64 s[98:99], exec")
        a("s_mov_b64 exec, 1")
        a("buffer_store_dword v252, v253, s[92:95], 0 offen")
        a("s_mov_b64 exec, s[98:99]")

    def masks(vbase, vlane, vt0, vt1):
        a(f"v_and_b32 {vt0}, 15, {vlane}")
        a(f"v_and_b32 {vt1}, 1, {vlane}")
        a(f"v_sub_u32 {vt1}, 0, {vt1}")
        a(f"v_xor_b32 {vt1}, 0xffff, {vt1}")
        a(f"v_lshrrev_b32 {vt0}, 1, {vt0}")
        for r in range(4):
            a(f"v_cmp_eq_u32 vcc, {r}, {vt0}")
            a(f"v_cndmask_b32 v{vbase+r}, 0, {vt1}, vcc")

    a.label(KN)
    a("s_cmp_ge_u32 s2, 256")
    a("s_cbranch_scc1 L_end")
    a("s_load_dwordx4 s[4:7], s[0:1], 8")
    a("v_lshrrev_b32 v1, 6, v0")
    a("v_and_b32 v0, 63, v0")
    a("s_and_b32 s16, s2, 7")
    a("s_lshl_b32 s16, s16, 2")
    a("s_bfe_u32 s3, s2, 0x20003")
    a("v_readfirstlane_b32 s19, v1")
    a("s_add_u32 s16, s16, s3")
    a("s_lshr_b32 s17, s2, 5")
    a("s_lshl_b32 s18, s17, 5")
    a("s_add_u32 s18, s18, s16")
    if stamps:
        a("s_load_dwordx2 s[92:93], s[0:1], 96")
        a("s_waitcnt lgkmcnt(0)")
        a("s_lshl_b32 s94, s2, 8")
        a("s_add_u32 s92, s92, s94"); a("s_addc_u32 s93, s93, 0")
        a("s_add_u32 s92, s92, 0x400000"); a("s_addc_u32 s93, s93, 0")
        a("s_mov_b32 s94, 256"); a("s_mov_b32 s95, 0x20000")
    a("s_cmp_lg_u32 s19, 0")
    a("s_cbranch_scc1 L_notloader")

    a.c("==== loader wave: K/V stream, LDS-DMA ring")
    a("s_setprio 3")
    if stamps: a("s_mov_b32 s91, 0")
    stamp(0)
    a("v_lshrrev_b32 v8, 4, v0")
    a("v_and_b32 v9, 15, v0")
    for m in range(4):
        a(f"v_add_u32 v10, {4*m}, v8")
        a("v_xor_b32 v10, v10, v9")
        a("v_lshlrev_b32 v10, 4, v10")
        a(f"v_lshl_add_u32 v{2+m}, v8, 8, v10")
    a("v_lshlrev_b32 v6, 4, v0")
    a(f"v_mov_b32 v7, {CTL}")
    a("s_lshr_b32 s20, s18, 12")
    a("s_lshl_b32 s21, s18, 20")
    a("s_mov_b32 s10, 0x100000"); a("s_mov_b32 s11, 0x20000")
    a("s_mov_b32 s14, 0x100000"); a("s_mov_b32 s15, 0x20000")
    a("s_waitcnt lgkmcnt(0)")
    a("s_add_u32 s8, s4, s21"); a("s_addc_u32 s9, s5, s20")
    a("s_add_u32 s12, s6, s21"); a("s_addc_u32 s13, s7, s20")
    def group(grp, sgo, sslot):
        srd = "s[8:11]" if grp < 2 else "s[12:15]"
        a(f"s_add_u32 m0, {sslot}, {grp*4096}")
        a(f"s_add_u32 s24, {sgo}, {(grp&1)*4096}")
        for m in range(4):
            vo = f"v{2+m}" if grp < 2 else "v6"
            a(f"buffer_load_dwordx4 {vo}, {srd}, s24 offen offset:{m*1024} {kvflags} lds")
    a("s_mov_b32 s22, 0"); a("s_mov_b32 s23, 0")
    for grp in range(4): group(grp, "s22", "s23")
    a("s_barrier")
    a("ds_read_b128 v[12:15], v7 offset:%d" % O_NEXT)
    a("s_mov_b32 s25, 1")
    a("s_mov_b32 s22, 8192"); a(f"s_mov_b32 s23, {SLOT}")
    a.label("L_ld_loop")
    a("s_waitcnt lgkmcnt(0)")
    a("v_min3_u32 v9, v12, v13, v14")
    a("v_readfirstlane_b32 s30, v15")
    a("v_readfirstlane_b32 s26, v9")
    a(f"s_add_u32 s26, s26, {NSLOT-1}")
    a("s_cmp_ge_u32 s26, s25")
    a(f"s_cbranch_scc1 L_ld_free")
    a(f"s_mov_b32 s27, {TO}")
    if stamps: a("s_add_u32 s91, s91, 1")
    a.label(f"L_ld_spin")
    a("s_sleep 1")
    a("ds_read_b128 v[12:15], v7 offset:%d" % O_NEXT)
    a("s_waitcnt lgkmcnt(0)")
    a("v_min3_u32 v9, v12, v13, v14")
    a("v_readfirstlane_b32 s26, v9")
    a(f"s_add_u32 s26, s26, {NSLOT-1}")
    a("s_cmp_ge_u32 s26, s25")
    a(f"s_cbranch_scc1 L_ld_free")
    a("s_sub_u32 s27, s27, 1")
    a("s_cmp_lg_u32 s27, 0")
    a(f"s_cbranch_scc1 L_ld_spin")
    a.label(f"L_ld_free")
    if stamps:
        a("s_and_b32 s90, s25, 7"); a("s_cmp_lg_u32 s90, 0"); a(f"s_cbranch_scc1 L_ld_nost")
        a("s_lshr_b32 s90, s25, 3"); a("s_add_u32 s90, s90, 16"); a("s_lshl_b32 s90, s90, 2")
        stamp_s("s90")
        a.label(f"L_ld_nost")
    a("s_lshl_b32 s28, s25, 2")
    lv = list(levels) if (adapt or sched) else [levels[0]]
    if sched:
        a("s_mov_b32 s30, 0")
        for (t0_, lvl) in sched:
            a(f"s_cmp_ge_u32 s25, {t0_}")
            a(f"s_cselect_b32 s30, {lvl}, s30")
    for k in range(1, len(lv)):
        a(f"s_cmp_eq_u32 s30, {k}")
        a(f"s_cbranch_scc1 L_ld_body{k}")
    for k, N in enumerate(lv):
        NG = N // 4
        if k: a.label(f"L_ld_body{k}")
        for grp in range(4):
            a(f"s_waitcnt vmcnt({N-4})")
            group(grp, "s22", "s23")
            a(f"s_add_i32 s29, s28, {grp - NG + 1}")
            a("v_mov_b32 v8, s29")
            a(f"ds_write_b32 v7, v8 offset:{O_LANDED}")
            if grp == 2: a("ds_read_b128 v[12:15], v7 offset:%d" % O_NEXT)
        if k != len(lv) - 1: a("s_branch L_ld_next")
    a.label("L_ld_next")
    a("s_add_u32 s22, s22, 8192")
    a(f"s_add_u32 s23, s23, {SLOT}")
    a(f"s_cmp_ge_u32 s23, {SLOT*NSLOT}")
    a("s_cselect_b32 s23, 0, s23")
    a("s_add_u32 s25, s25, 1")
    a(f"s_cmp_lt_u32 s25, {NT}")
    a(f"s_cbranch_scc1 L_ld_loop")
    NG = max(lv) // 4
    for k in range(NG):
        a(f"s_waitcnt vmcnt({4*(NG-1-k)})")
        a(f"v_mov_b32 v8, {4*NT - NG + 1 + k}")
        a(f"ds_write_b32 v7, v8 offset:{O_LANDED}")
    stamp(1)
    if stamps:
        a("v_mov_b32 v252, s91"); a("v_mov_b32 v253, 60"); a("s_mov_b64 exec, 1")
        a("buffer_store_dword v252, v253, s[92:95], 0 offen"); a("s_mov_b64 exec, -1")
    a("s_setprio 0")
    a("s_branch L_join")

    a.label("L_notloader")
    a("s_cmp_ge_u32 s19, 4")
    a("s_cbranch_scc1 L_side")

    a.c("==== consumer waves")
    Q = 16; KD = 32; VD = 64; AO = 96; S = 128; O = 136; MK = 140; KA = 144; KC = 148
    VA, VC, MS, LS, AL, T0, T1, CT = 152, 153, 154, 155, 156, 157, 158, 159
    a("s_sub_u32 s20, s19, 1")
    a(f"v_mov_b32 v{CT}, {CTL}")
    masks(MK, "v0", f"v{T0}", f"v{T1}")
    a(f"v_lshrrev_b32 v1, 4, v0")
    a(f"v_and_b32 v2, 15, v0")
    for r in range(4):
        a(f"v_add_u32 v3, {4*r}, v1")
        a("v_xor_b32 v3, v3, v2")
        a("v_lshlrev_b32 v3, 4, v3")
        a(f"v_lshl_add_u32 v{KA+r}, v2, 8, v3")
    a("v_lshlrev_b32 v3, 4, v2")
    a(f"v_lshl_add_u32 v{VA}, v1, 10, v3")
    a(f"v_lshl_add_u32 v4, v1, 4, v{CT}")
    a(f"v_mov_b32 v{MS}, 0xff7fffff")
    a(f"v_mov_b32 v{LS}, 0")
    for r in range(4): a(f"v_mov_b32 v{O+r}, 0")
    a(f"s_mov_b32 s21, {f2u(C1):#x}")
    if adapt:
        a("s_load_dwordx2 s[32:33], s[0:1], 88")
        a("s_mul_i32 s31, s2, 171"); a("s_lshr_b32 s31, s31, 11"); a("s_mul_i32 s31, s31, 12"); a("s_sub_u32 s31, s2, s31")
        a("s_mov_b32 s34, 256"); a("s_mov_b32 s35, 0x20000")
        a("s_waitcnt lgkmcnt(0)")
    a("s_barrier")
    a("s_mov_b32 s22, s20")
    a("s_lshl_b32 s23, s20, 14")
    a("s_mov_b32 s28, -1")
    def c_addr():
        a("s_lshl_b32 s24, s22, 2")
        for r in range(4): a(f"v_add_u32 v{KC+r}, s23, v{KA+r}")
        a(f"v_add_u32 v{VC}, s23, v{VA}")
    def c_wait(tag):
        a("s_cmp_ge_i32 s28, s24")
        a(f"s_cbranch_scc1 L_c_{tag}")
        lds_wait_ge(f"v{CT}", O_LANDED, "s24", f"v{T0}", "s28", "s27")
        a.label(f"L_c_{tag}")
    def c_kreads():
        for u in range(2):
            for r in range(4):
                d = KD + (u*4+r)*4
                a(f"ds_read_b128 v[{d}:{d+3}], v{KC+r} offset:{u*4096}")
    def c_qk(waits):
        for u in range(2):
            for r in range(4):
                d = KD + (u*4+r)*4
                if waits: a(f"s_waitcnt lgkmcnt({7-(u*4+r)})")
                c = "0" if r == 0 else f"v[{S+4*u}:{S+4*u+3}]"
                a(f"v_mfma_f32_16x16x32_bf16 v[{S+4*u}:{S+4*u+3}], v[{d}:{d+3}], v[{Q+4*r}:{Q+4*r+3}], {c}")
    def c_softmax():
        a(f"v_max3_f32 v{T0}, v{S}, v{S+1}, v{S+2}")
        a(f"v_max3_f32 v{T1}, v{S+3}, v{S+4}, v{S+5}")
        a(f"v_max3_f32 v{T0}, v{T0}, v{S+6}, v{S+7}")
        a(f"v_max_f32 v{T0}, v{T0}, v{T1}")
        a(f"v_mul_f32 v{T0}, s21, v{T0}")
        a(f"v_max_f32 v{T0}, v{T0}, v{MS}")
        a(f"v_max_f32_dpp v{T0}, v{T0}, v{T0} row_bcast:15 row_mask:0xa bank_mask:0xf")
        a(f"v_max_f32_dpp v{T0}, v{T0}, v{T0} row_bcast:31 row_mask:0xc bank_mask:0xf")
        a(f"v_readlane_b32 s29, v{T0}, 63")
        a(f"v_subrev_f32 v{AL}, s29, v{MS}")
        a(f"v_mov_b32 v{MS}, s29")
        a(f"v_exp_f32 v{AL}, v{AL}")
        for k in range(8): a(f"v_fma_f32 v{S+k}, v{S+k}, s21, -v{MS}")
        for k in range(8): a(f"v_exp_f32 v{S+k}, v{S+k}")
        a(f"v_mul_f32 v{LS}, v{LS}, v{AL}")
        for r in range(4): a(f"v_mul_f32 v{O+r}, v{O+r}, v{AL}")
        for k in range(8):
            a(f"v_cvt_pk_bf16_f32 v{T1}, v{S+k}, v{S+k}")
            a(f"v_add_f32 v{LS}, v{LS}, v{S+k}")
            for r in range(4): a(f"v_and_b32 v{AO+4*k+r}, v{T1}, v{MK+r}")
    def c_vreads():
        for k in range(8):
            u, r = k >> 2, k & 3
            d = VD + 4*k
            a(f"ds_read_b128 v[{d}:{d+3}], v{VC} offset:{8192 + u*4096 + r*256}")
    def c_advance():
        a("s_add_u32 s22, s22, %d" % NCONS)
        a(f"v_mov_b32 v{T0}, s22")
        a("s_lshl_b32 s30, s20, 2")
        a(f"v_add_u32 v{T1}, s30, v{CT}")
        a(f"s_add_u32 s23, s23, {NCONS*SLOT}")
        a(f"s_sub_u32 s30, s23, {NSLOT*SLOT}")
        a(f"s_cmp_ge_u32 s23, {NSLOT*SLOT}")
        a("s_cselect_b32 s23, s30, s23")
    def c_free():
        a(f"ds_write_b32 v{T1}, v{T0} offset:{O_NEXT}")
    def c_pv(waits):
        for k in range(8):
            d = VD + 4*k
            if waits:
                a(f"s_waitcnt lgkmcnt({7-k})")
                if k == 7: c_free()
            a(f"v_mfma_f32_16x16x32_bf16 v[{O}:{O+3}], v[{AO+4*k}:{AO+4*k+3}], v[{d}:{d+3}], v[{O}:{O+3}]")
    def c_checkpoint(tag):
        assert period == 12
        a(f"s_sub_u32 s30, s22, {NCONS}")
        a("s_cmp_lg_u32 s30, s31")
        a(f"s_cbranch_scc1 L_c_nocp{tag}")
        a(f"s_add_u32 s31, s31, {period}")
        a(f"v_mov_b32 v{T0}, 1"); a(f"v_mov_b32 v{T1}, {O_G}")
        a("s_mov_b64 exec, 1")
        a(f"buffer_atomic_add v{T0}, v{T1}, s[32:35], 0 offen sc0")
        a("s_waitcnt vmcnt(0)")
        a("s_mov_b64 exec, -1")
        a(f"v_readfirstlane_b32 s36, v{T0}")
        a("s_add_u32 s37, s30, 1")
        a("s_lshl_b32 s37, s37, 8")
        a(f"s_mul_i32 s36, s36, {period}")
        a("s_sub_i32 s36, s36, s37")
        a("s_mov_b32 s37, 0")
        for k, t in enumerate(th):
            a(f"s_cmp_gt_i32 s36, {t}" if t > 0 else f"s_cmp_lt_i32 s36, {t}")
            a(f"s_cselect_b32 s37, {k+1}, s37")
        a(f"v_mov_b32 v{T0}, s37")
        a(f"ds_write_b32 v{CT}, v{T0} offset:{O_NEXT + 12}")
        if stamps:
            a("s_lshr_b32 s90, s31, 2"); a("s_and_b32 s90, s90, 0xfc"); a("s_sub_u32 s90, s31, 12")
            a("s_mul_i32 s90, s90, 171"); a("s_lshr_b32 s90, s90, 11"); a("s_add_u32 s90, s90, 40"); a("s_lshl_b32 s90, s90, 2")
            a("v_mov_b32 v252, s36"); a("v_mov_b32 v253, s90"); a("s_mov_b64 exec, 1")
            a("buffer_store_dword v252, v253, s[92:95], 0 offen"); a("s_mov_b64 exec, -1")
        a.label(f"L_c_nocp{tag}")
    if preload:
        c_addr()
        a("s_add_u32 s24, s24, 4")
        c_wait("first")
        c_kreads()
        a("s_waitcnt lgkmcnt(0)")
        c_vreads()
        c_advance()
        a("s_waitcnt lgkmcnt(0)")
        c_free()
    lds_wait_ge(f"v{CT}", O_QRDY, "1", f"v{T0}", "s26", "s27")
    stamp(9)
    for r in range(4):
        a(f"ds_read_b128 v[{Q+4*r}:{Q+4*r+3}], v4 offset:{O_QBF + 64*r}")
    if preload:
        a("s_waitcnt lgkmcnt(0)")
        c_qk(False)
        c_softmax()
        c_pv(False)
        if adapt: c_checkpoint("b")
    a.label("L_c_loop")
    c_addr()
    a("s_add_u32 s24, s24, 2")
    c_wait("kok")
    c_kreads()
    c_qk(True)
    a("s_add_u32 s24, s24, 2")
    c_softmax()
    c_wait("vok")
    c_vreads()
    c_advance()
    c_pv(True)
    if adapt: c_checkpoint("a")
    a(f"s_cmp_lt_u32 s22, {NT}")
    a("s_cbranch_scc1 L_c_loop")
    a(f"v_add_f32_dpp v{LS}, v{LS}, v{LS} row_bcast:15 row_mask:0xa bank_mask:0xf")
    a(f"v_add_f32_dpp v{LS}, v{LS}, v{LS} row_bcast:31 row_mask:0xc bank_mask:0xf")
    a(f"v_readlane_b32 s29, v{LS}, 63")
    a("s_lshl_b32 s23, s20, 10")
    a("v_lshrrev_b32 v1, 4, v0"); a("v_and_b32 v2, 15, v0")
    a("v_lshlrev_b32 v1, 4, v1"); a("v_lshl_add_u32 v1, v2, 5, v1")
    a(f"v_add_u32 v1, s23, v1"); a(f"v_add_u32 v1, v1, v{CT}")
    a(f"v_add_u32 v2, s23, v{CT}")
    a(f"v_mov_b32 v{MS+1}, s29")
    a("s_mov_b32 exec_hi, 0")
    a(f"ds_write_b128 v1, v[{O}:{O+3}] offset:{O_APART}")
    a("s_mov_b32 exec_lo, 1")
    a(f"ds_write_b64 v2, v[{MS}:{MS+1}] offset:{O_APART + 512}")
    a("s_mov_b64 exec, -1")
    stamp(2)
    a("s_branch L_join")

    a.label("L_side")
    a.c("==== side waves: q projection, gate, FFN, output projection")
    MKs = 4; A0 = 8; A1 = 52; Y = 12; X = 32; QA = 56; W = 64
    VAD = 60; VO = 62; VT0, VT1, VT2, VT3 = 224, 225, 226, 227; CTs = 228; VG = 229; VG1 = 230
    a("s_sub_u32 s20, s19, 4")
    a("s_load_dwordx2 s[44:45], s[0:1], 0")
    a("s_load_dwordx4 s[24:27], s[0:1], 24")
    a("s_load_dwordx4 s[28:31], s[0:1], 48")
    a("s_load_dwordx4 s[32:35], s[0:1], 64")
    a(f"v_mov_b32 v{CTs}, {CTL}")
    a("v_lshrrev_b32 v1, 4, v0")
    a("v_and_b32 v2, 15, v0")
    a("s_cmp_lg_u32 s20, 0")
    a("s_cbranch_scc1 L_s_noinit")
    a("v_mov_b32 v8, 0"); a("v_mov_b32 v9, 0"); a("v_mov_b32 v10, 0"); a("v_mov_b32 v11, 0")
    a(f"ds_write_b128 v{CTs}, v[8:11] offset:0")
    a(f"ds_write_b128 v{CTs}, v[8:11] offset:32")
    a("v_mov_b32 v9, 1"); a("v_mov_b32 v10, 2"); a("v_mov_b32 v11, 0")
    a(f"ds_write_b128 v{CTs}, v[8:11] offset:{O_NEXT}")
    a.label("L_s_noinit")
    a("v_lshlrev_b32 v3, 3, v1")
    a(f"v_lshlrev_b32 v{VT0}, 15, v1")
    a(f"v_lshl_add_u32 v{VT0}, v2, 4, v{VT0}")
    if rot: a("s_lshl_b32 s46, s17, 2"); a("s_add_u32 s46, s46, s20")
    else: a("s_mov_b32 s46, s20")
    for st in range(10):
        a(f"s_add_u32 s21, s46, {4*st}")
        a("s_sub_u32 s22, s21, 40")
        a("s_cmp_ge_u32 s21, 40")
        a(f"s_cselect_b32 s{50+st}, s22, s21")
    a("s_waitcnt lgkmcnt(0)")
    a("s_mul_i32 s21, s17, 1280")
    a("s_add_u32 s4, s44, s21"); a("s_addc_u32 s5, s45, 0"); a("s_mov_b32 s6, 1280"); a("s_mov_b32 s7, 0x20000")
    a("s_lshl_b32 s21, s16, 8")
    a("s_add_u32 s8, s24, s21"); a("s_addc_u32 s9, s25, 0")
    a(f"s_sub_u32 s10, {640*8192}, s21"); a("s_mov_b32 s11, 0x20000")
    for k in range(10):
        a(f"s_lshl_b32 s21, s{50+k}, 5")
        a(f"buffer_load_dwordx2 v[{X+2*k}:{X+2*k+1}], v3, s[4:7], s21 offen")
    def wq_issue(n):
        k, r = n >> 2, n & 3
        a(f"s_lshl_b32 s21, s{50+k}, 17")
        if r: a(f"s_add_u32 s21, s21, {r*8192}")
        a(f"buffer_load_dwordx4 v[{W+4*n}:{W+4*n+3}], v{VT0}, s[8:11], s21 offen {wflags}")
    for n in range(swq): wq_issue(n)
    stamp(6)
    a("s_barrier")
    masks(MKs, "v0", f"v{VT1}", f"v{VT2}")
    a("s_mov_b32 s36, 0x01000100"); a("s_mov_b32 s37, 0x03020302")
    ns = 1 if stamps else 0
    a(f"s_waitcnt vmcnt({swq + ns})")
    stamp(7)
    def gemv_steps(nblk, acc, first_zero, waitfn, postfn=None):
        for k in range(nblk):
            for r in range(4):
                n = 4*k + r
                A = A0 if n % 2 == 0 else A1
                xs = X + 2*k + (r >> 1)
                a(f"v_perm_b32 v{VT1}, v{xs}, v{xs}, s{36 + (r & 1)}")
                for q in range(4): a(f"v_and_b32 v{A+q}, v{VT1}, v{MKs+q}")
                waitfn(n)
                c = "0" if (n == 0 and first_zero) else f"v[{acc}:{acc+3}]"
                a(f"v_mfma_f32_16x16x32_bf16 v[{acc}:{acc+3}], v[{A}:{A+3}], v[{W+4*n}:{W+4*n+3}], {c}")
    def window(issue, total, win):
        def f(n):
            a(f"s_waitcnt vmcnt({min(win, total - n) - 1})")
            if n + win < total: issue(n + win)
        return f
    gemv_steps(10, QA, True, window(wq_issue, 40, swq))
    stamp(8)
    a("v_lshlrev_b32 v3, 4, v1"); a("v_lshl_add_u32 v3, v2, 5, v3")
    a("s_lshl_b32 s21, s20, 9")
    a(f"v_add3_u32 v{VT2}, v3, s21, v{CTs}")
    a("s_mov_b32 exec_hi, 0")
    a(f"ds_write_b128 v{VT2}, v[{QA}:{QA+3}] offset:{O_QPART}")
    a("s_mov_b64 exec, -1")
    a(f"v_mov_b32 v{VT1}, 1")
    a("s_waitcnt lgkmcnt(0)")
    a("s_mov_b64 exec, 1")
    a(f"ds_add_rtn_u32 v{VT1}, v{CTs}, v{VT1} offset:{O_QCNT}")
    a("s_mov_b64 exec, -1")
    a("s_waitcnt lgkmcnt(0)")
    a(f"v_readfirstlane_b32 s21, v{VT1}")
    a("s_cmp_lg_u32 s21, 3")
    a("s_cbranch_scc1 L_s_qdone")
    a(f"v_lshl_add_u32 v{VT2}, v0, 3, v{CTs}")
    for c in range(4):
        a(f"ds_read_b64 v[{W+2*c}:{W+2*c+1}], v{VT2} offset:{O_QPART + 512*c}")
    a("s_waitcnt lgkmcnt(0)")
    a(f"v_add_f32 v{W}, v{W}, v{W+2}"); a(f"v_add_f32 v{W+1}, v{W+1}, v{W+3}")
    a(f"v_add_f32 v{W+4}, v{W+4}, v{W+6}"); a(f"v_add_f32 v{W+5}, v{W+5}, v{W+7}")
    a(f"v_add_f32 v{W}, v{W}, v{W+4}"); a(f"v_add_f32 v{W+1}, v{W+1}, v{W+5}")
    a(f"v_cvt_pk_bf16_f32 v{W}, v{W}, v{W+1}")
    a(f"v_lshl_add_u32 v{VT2}, v0, 2, v{CTs}")
    a(f"ds_write_b32 v{VT2}, v{W} offset:{O_QBF}")
    a(f"v_mov_b32 v{VT1}, 1")
    a("s_waitcnt lgkmcnt(0)")
    a(f"ds_write_b32 v{CTs}, v{VT1} offset:{O_QRDY}")
    a.label("L_s_qdone")
    stamp(3)
    a("s_cmp_lg_u32 s20, 0")
    a("s_cbranch_scc1 L_s_nosent")
    a("s_load_dwordx2 s[64:65], s[0:1], 96")
    a("s_load_dwordx2 s[68:69], s[0:1], 88")
    a("v_lshlrev_b32 v3, 4, v0")
    for e in range(4): a(f"v_mov_b32 v{W+e}, -1")
    a(f"s_mul_i32 s21, s18, {YSTRIDE}")
    a("s_mov_b32 s66, 2560"); a("s_mov_b32 s67, 0x20000"); a("s_mov_b32 s70, 256"); a("s_mov_b32 s71, 0x20000")
    a("s_waitcnt lgkmcnt(0)")
    a("s_add_u32 s64, s64, s21"); a("s_addc_u32 s65, s65, 0")
    for q in range(3):
        a(f"buffer_store_dwordx4 v[{W}:{W+3}], v3, s[64:67], 0 offen offset:{1024*q} sc1")
    a("s_waitcnt vmcnt(0)")
    a.label("L_s_nosent")
    a("s_mov_b32 s8, s34"); a("s_mov_b32 s9, s35"); a("s_mov_b32 s10, 1280"); a("s_mov_b32 s11, 0x20000")
    a("v_lshlrev_b32 v3, 4, v0")
    a(f"buffer_load_dwordx4 v[{W}:{W+3}], v3, s[4:7], 0 offen")
    a(f"buffer_load_dwordx4 v[{W+4}:{W+7}], v3, s[4:7], 0 offen offset:1024")
    a(f"buffer_load_dwordx4 v[{W+8}:{W+11}], v3, s[8:11], 0 offen")
    a(f"buffer_load_dwordx4 v[{W+12}:{W+15}], v3, s[8:11], 0 offen offset:1024")
    a(f"v_mov_b32 v{VG}, 0")
    a("s_waitcnt vmcnt(0)")
    for k in range(8):
        xs, wsr = W + k, W + 8 + k
        a(f"v_lshlrev_b32 v{VT0}, 16, v{xs}"); a(f"v_lshlrev_b32 v{VT1}, 16, v{wsr}")
        a(f"v_and_b32 v{VT2}, 0xffff0000, v{xs}"); a(f"v_and_b32 v{VT3}, 0xffff0000, v{wsr}")
        a(f"v_mul_f32 v{VT0}, v{VT0}, v{VT1}"); a(f"v_mul_f32 v{VT2}, v{VT2}, v{VT3}")
        a(f"v_cvt_pk_bf16_f32 v{VT0}, v{VT0}, v{VT2}")
        a(f"v_lshlrev_b32 v{VT1}, 16, v{VT0}"); a(f"v_and_b32 v{VT2}, 0xffff0000, v{VT0}")
        a(f"v_add_f32 v{VG}, v{VG}, v{VT1}"); a(f"v_add_f32 v{VG}, v{VG}, v{VT2}")
    for sh in (1, 2, 4, 8):
        a(f"v_add_f32_dpp v{VG}, v{VG}, v{VG} row_ror:{sh} row_mask:0xf bank_mask:0xf")
    a(f"v_add_f32_dpp v{VG}, v{VG}, v{VG} row_bcast:15 row_mask:0xa bank_mask:0xf")
    a(f"v_add_f32_dpp v{VG}, v{VG}, v{VG} row_bcast:31 row_mask:0xc bank_mask:0xf")
    a(f"v_readlane_b32 s21, v{VG}, 63")
    a(f"v_mov_b32 v{VG}, s21")
    a(f"v_cvt_pk_bf16_f32 v{VG}, v{VG}, v{VG}")
    a(f"v_and_b32 v{VG}, 0xffff0000, v{VG}")
    a(f"v_mul_f32 v{VG}, {f2u(-LOG2E):#x}, v{VG}")
    a(f"v_exp_f32 v{VG}, v{VG}")
    a(f"v_add_f32 v{VG}, 1.0, v{VG}")
    a(f"v_rcp_f32 v{VG}, v{VG}")
    a(f"v_cvt_pk_bf16_f32 v{VG}, v{VG}, v{VG}")
    a(f"v_and_b32 v{VG}, 0xffff0000, v{VG}")
    a(f"v_sub_f32 v{VG1}, 1.0, v{VG}")
    a(f"v_cvt_pk_bf16_f32 v{VG1}, v{VG1}, v{VG1}")
    a(f"v_and_b32 v{VG1}, 0xffff0000, v{VG1}")
    for r in range(20): a(f"v_mov_b32 v{Y+r}, 0")
    a("s_cmp_ge_u32 s16, 27")
    a("s_cbranch_scc1 L_s_noffn")
    if rot and not rotf:
        a("v_lshrrev_b32 v3, 4, v0"); a("v_lshlrev_b32 v3, 3, v3")
        for k in range(10):
            a(f"s_add_u32 s{50+k}, s20, {4*k}")
            a(f"s_lshl_b32 s21, s{50+k}, 5")
            a(f"buffer_load_dwordx2 v[{X+2*k}:{X+2*k+1}], v3, s[4:7], s21 offen")
        a("s_waitcnt vmcnt(0)")
    a("v_cmp_gt_u32 vcc, 8, v2")
    a(f"v_mov_b32 v{VT0}, s30"); a(f"v_mov_b32 v{VT1}, s28")
    a(f"v_cndmask_b32 v{VAD}, v{VT0}, v{VT1}, vcc")
    a(f"v_mov_b32 v{VT0}, s31"); a(f"v_mov_b32 v{VT1}, s29")
    a(f"v_cndmask_b32 v{VAD+1}, v{VT0}, v{VT1}, vcc")
    a(f"s_movk_i32 s21, {4*3456}")
    a(f"v_mul_lo_u32 v{VT0}, v1, s21")
    a(f"v_and_b32 v{VT1}, 7, v2")
    a(f"v_lshl_add_u32 v{VT0}, v{VT1}, 4, v{VT0}")
    a("s_lshl_b32 s21, s16, 7")
    a(f"v_add_u32 v{VT0}, s21, v{VT0}")
    a(f"v_mov_b32 v{VT1}, 0")
    VB = 250
    a(f"v_lshl_add_u64 v[{VB}:{VB+1}], v[{VT0}:{VT1}], 0, v[{VAD}:{VAD+1}]")
    a("s_mov_b32 s38, 6912"); a("s_mov_b32 s39, 0"); a("s_mov_b32 s41, 0")
    def gu_issue(n):
        k, r = n >> 2, n & 3
        if r == 0:
            a(f"s_mul_i32 s40, s{50+k}, {16*3456}")
            a(f"v_lshl_add_u64 v[{VAD}:{VAD+1}], v[{VB}:{VB+1}], 0, s[40:41]")
        a(f"global_load_dwordx4 v[{W+4*n}:{W+4*n+3}], v[{VAD}:{VAD+1}], off offset:{(r&1)*3456} {wflags}")
        if r == 1: a(f"v_lshl_add_u64 v[{VAD}:{VAD+1}], v[{VAD}:{VAD+1}], 0, s[38:39]")
    for n in range(swf): gu_issue(n)
    gemv_steps(10, QA, True, window(gu_issue, 40, swf))
    a("v_lshlrev_b32 v3, 4, v1"); a("v_lshl_add_u32 v3, v2, 5, v3")
    a("s_lshl_b32 s21, s20, 9")
    a(f"v_add3_u32 v{VT2}, v3, s21, v{CTs}")
    a("s_mov_b32 exec_hi, 0")
    a(f"ds_write_b128 v{VT2}, v[{QA}:{QA+3}] offset:{O_GUPART}")
    a("s_mov_b64 exec, -1")
    a(f"v_mov_b32 v{VT1}, 1")
    a("s_waitcnt lgkmcnt(0)")
    a("s_mov_b64 exec, 1")
    a(f"ds_add_u32 v{CTs}, v{VT1} offset:{O_GUCNT}")
    a("s_mov_b64 exec, -1")
    a("s_mov_b32 s8, s32"); a("s_mov_b32 s9, s33"); a(f"s_mov_b32 s10, {1728*1280}"); a("s_mov_b32 s11, 0x20000")
    a("s_lshl_b32 s21, s20, 4")
    a(f"v_lshl_add_u32 v{VT0}, v1, 2, s21")
    a("s_movk_i32 s21, 1280")
    a(f"v_mul_lo_u32 v{VO}, v{VT0}, s21")
    a(f"v_lshl_add_u32 v{VO}, v2, 4, v{VO}")
    a(f"s_mul_i32 s22, s16, {64*1280}")
    def wd_issue(n):
        r, cb = n // 5, n % 5
        a(f"s_add_u32 s21, s22, {r*1280}")
        a(f"buffer_load_dwordx4 v[{W+4*n}:{W+4*n+3}], v{VO}, s[8:11], s21 offen offset:{cb*256} {wflags}")
    for n in range(20):
        if n >= swf: a(f"s_waitcnt vmcnt({swf-1})")
        wd_issue(n)
    lds_wait_ge(f"v{CTs}", O_GUCNT, "4", f"v{VT1}", "s43", "s42")
    a(f"v_lshl_add_u32 v{VT0}, v{VT0}, 2, v{CTs}")
    G0 = 160
    for c in range(4):
        a(f"ds_read_b128 v[{G0+8*c}:{G0+8*c+3}], v{VT0} offset:{O_GUPART + 512*c}")
        a(f"ds_read_b128 v[{G0+8*c+4}:{G0+8*c+7}], v{VT0} offset:{O_GUPART + 512*c + 256}")
    a("s_waitcnt lgkmcnt(0)")
    for e in range(8):
        a(f"v_add_f32 v{G0+e}, v{G0+e}, v{G0+8+e}")
        a(f"v_add_f32 v{G0+16+e}, v{G0+16+e}, v{G0+24+e}")
    for e in range(8): a(f"v_add_f32 v{G0+e}, v{G0+e}, v{G0+16+e}")
    for r in range(4):
        gt, up = G0 + r, G0 + 4 + r
        a(f"v_cvt_pk_bf16_f32 v{VT1}, v{gt}, v{up}")
        a(f"v_lshlrev_b32 v{gt}, 16, v{VT1}")
        a(f"v_and_b32 v{up}, 0xffff0000, v{VT1}")
        a(f"v_max_f32 v{gt}, 0, v{gt}")
        a(f"v_mul_f32 v{gt}, v{gt}, v{up}")
        a(f"v_cvt_pk_bf16_f32 v{gt}, v{gt}, v{gt}")
        a(f"v_and_b32 v{gt}, 0xffff0000, v{gt}")
        a(f"v_mul_f32 v{gt}, v{gt}, v{VG1}")
    for r in range(4):
        A = A0 if r % 2 == 0 else A1
        a(f"v_cvt_pk_bf16_f32 v{VT1}, v{G0+r}, v{G0+r}")
        for q in range(4): a(f"v_and_b32 v{A+q}, v{VT1}, v{MKs+q}")
        for cb in range(5):
            n = 5*r + cb
            if n == 0: a("s_waitcnt vmcnt(0)")
            a(f"v_mfma_f32_16x16x32_bf16 v[{Y+4*cb}:{Y+4*cb+3}], v[{A}:{A+3}], v[{W+4*n}:{W+4*n+3}], v[{Y+4*cb}:{Y+4*cb+3}]")
    a.label("L_s_noffn")
    a("s_mov_b32 s8, s26"); a("s_mov_b32 s9, s27"); a(f"s_mov_b32 s10, {4096*1280}"); a("s_mov_b32 s11, 0x20000")
    a("s_lshl_b32 s21, s20, 5")
    a(f"v_lshl_add_u32 v{VT0}, v1, 2, s21")
    a("s_movk_i32 s21, 1280")
    a(f"v_mul_lo_u32 v{VO}, v{VT0}, s21")
    a(f"v_lshl_add_u32 v{VO}, v2, 4, v{VO}")
    a(f"s_mul_i32 s22, s16, {128*1280}")
    for n in range(40):
        k, r, cb = n // 20, (n // 5) % 4, n % 5
        if n >= swf: a(f"s_waitcnt vmcnt({swf-1})")
        a(f"s_add_u32 s21, s22, {(16*k + r)*1280}")
        a(f"buffer_load_dwordx4 v[{W+4*n}:{W+4*n+3}], v{VO}, s[8:11], s21 offen offset:{cb*256} {wflags}")
    a("s_waitcnt vmcnt(0)")
    stamp(4)
    a("s_cmp_lg_u32 s20, 0")
    a("s_cbranch_scc1 L_s_noarr")
    if static_red is None:
        lds_wait_ge(f"v{CTs}", O_LANDED, str(arr), f"v{VT1}", "s43", "s42", sleep=8)
        a("s_lshl_b32 s21, s17, 2")
        a(f"v_mov_b32 v{VT2}, s21"); a(f"v_mov_b32 v{VT1}, 1")
        a("s_mov_b64 exec, 1")
        a(f"buffer_atomic_add v{VT1}, v{VT2}, s[68:71], 0 offen sc0")
        a("s_waitcnt vmcnt(0)")
        a(f"ds_write_b32 v{CTs}, v{VT1} offset:{O_LAST}")
        a("s_mov_b64 exec, -1")
    else:
        a(f"s_cmp_eq_u32 s16, {static_red}")
        a("s_cselect_b32 s21, 31, 0")
        a(f"v_mov_b32 v{VT1}, s21")
        a(f"ds_write_b32 v{CTs}, v{VT1} offset:{O_LAST}")
    a("s_waitcnt lgkmcnt(0)")
    a.label("L_s_noarr")
    a("s_barrier")
    stamp(10)
    a(f"v_lshl_add_u32 v{VT0}, v{VT0}, 2, v{CTs}")
    M0r = 232
    for c in range(3):
        a(f"ds_read_b64 v[{M0r+2*c}:{M0r+2*c+1}], v{CTs} offset:{O_APART + 1024*c + 512}")
    OP = 32
    for c in range(3):
        for k in range(2):
            d = OP + (c*2 + k)*4
            if d + 3 < A1:
                pass
            a(f"ds_read_b128 v[{d}:{d+3}], v{VT0} offset:{O_APART + 1024*c + 64*k}")
    a("s_waitcnt lgkmcnt(6)")
    a(f"v_max3_f32 v{VT1}, v{M0r}, v{M0r+2}, v{M0r+4}")
    for c in range(3): a(f"v_sub_f32 v{M0r+2*c}, v{M0r+2*c}, v{VT1}")
    for c in range(3): a(f"v_exp_f32 v{M0r+2*c}, v{M0r+2*c}")
    a(f"v_mul_f32 v{VT1}, v{M0r}, v{M0r+1}")
    a(f"v_fma_f32 v{VT1}, v{M0r+2}, v{M0r+3}, v{VT1}")
    a(f"v_fma_f32 v{VT1}, v{M0r+4}, v{M0r+5}, v{VT1}")
    a(f"v_rcp_f32 v{VT1}, v{VT1}")
    a(f"v_mul_f32 v{VT1}, v{VT1}, v{VG}")
    for c in range(3): a(f"v_mul_f32 v{M0r+2*c}, v{M0r+2*c}, v{VT1}")
    a("s_waitcnt lgkmcnt(0)")
    OV = 240
    for k in range(2):
        for r in range(4):
            e = OV + 4*k + r
            a(f"v_mul_f32 v{e}, v{OP + k*4 + r}, v{M0r}")
            a(f"v_fma_f32 v{e}, v{OP + (2+k)*4 + r}, v{M0r+2}, v{e}")
            a(f"v_fma_f32 v{e}, v{OP + (4+k)*4 + r}, v{M0r+4}, v{e}")
    AA = [32, 36, 40, 44]
    for k in range(2):
        for r in range(4):
            n0 = 4*k + r
            A = AA[n0 % 4]
            a(f"v_cvt_pk_bf16_f32 v{VT1}, v{OV+n0}, v{OV+n0}")
            for q in range(4): a(f"v_and_b32 v{A+q}, v{VT1}, v{MKs+q}")
            for cb in range(5):
                n = n0*5 + cb
                a(f"v_mfma_f32_16x16x32_bf16 v[{Y+4*cb}:{Y+4*cb+3}], v[{A}:{A+3}], v[{W+4*n}:{W+4*n+3}], v[{Y+4*cb}:{Y+4*cb+3}]")
    a("v_lshlrev_b32 v3, 4, v1"); a("v_lshl_add_u32 v3, v2, 5, v3")
    a("s_mul_i32 s21, s20, 2560")
    a(f"v_add_u32 v{VT2}, s21, v3")
    a("s_mov_b32 exec_hi, 0")
    for cb in range(5):
        a(f"ds_write_b128 v{VT2}, v[{Y+4*cb}:{Y+4*cb+3}] offset:{YPART + 512*cb}")
    a("s_mov_b64 exec, -1")
    a("s_waitcnt lgkmcnt(0)")
    stamp(11)
    a("s_barrier")
    stamp(13)
    a("s_cmp_ge_u32 s20, 3")
    a("s_cbranch_scc1 L_end")
    a(f"ds_read_b32 v{VT1}, v{CTs} offset:{O_LAST}")
    a("s_lshl_b32 s21, s20, 10")
    a(f"v_lshl_add_u32 v{VT2}, v0, 4, s21")
    R0 = 64
    for c in range(4):
        a(f"ds_read_b128 v[{R0+4*c}:{R0+4*c+3}], v{VT2} offset:{YPART + 2560*c}")
    a("s_waitcnt lgkmcnt(4)")
    a(f"v_readfirstlane_b32 s22, v{VT1}")
    a("s_cmp_lg_u32 s22, 31")
    a("s_cbranch_scc1 L_pub")
    a("s_load_dwordx2 s[12:13], s[0:1], 80")
    for c in range(4, 8):
        a(f"ds_read_b128 v[{R0+4*c}:{R0+4*c+3}], v{VT2} offset:{YPART + 2560*c}")
    a("s_mul_i32 s21, s17, 1280")
    a("s_mov_b32 s14, 1280"); a("s_mov_b32 s15, 0x20000")
    a(f"v_lshrrev_b32 v{VT2}, 1, v{VT2}")
    a("s_waitcnt lgkmcnt(0)")
    a("s_add_u32 s12, s12, s21"); a("s_addc_u32 s13, s13, 0")
    for (x, y) in ((0, 1), (2, 3), (4, 5), (6, 7), (0, 2), (4, 6), (0, 4)):
        a(f"v_pk_add_f32 v[{R0+4*x}:{R0+4*x+1}], v[{R0+4*x}:{R0+4*x+1}], v[{R0+4*y}:{R0+4*y+1}]")
        a(f"v_pk_add_f32 v[{R0+4*x+2}:{R0+4*x+3}], v[{R0+4*x+2}:{R0+4*x+3}], v[{R0+4*y+2}:{R0+4*y+3}]")
    a(f"v_cvt_pk_bf16_f32 v{R0}, v{R0}, v{R0+1}")
    a(f"v_cvt_pk_bf16_f32 v{R0+1}, v{R0+2}, v{R0+3}")
    a(f"buffer_store_dwordx2 v[{R0}:{R0+1}], v{VT2}, s[12:15], 0 offen")
    stamp(5)
    a("s_endpgm")
    a.label("L_pub")
    a("s_load_dwordx2 s[12:13], s[0:1], 96")
    a(f"s_mul_i32 s21, s18, {YSTRIDE}")
    a("s_mov_b32 s14, 2560"); a("s_mov_b32 s15, 0x20000")
    a("s_waitcnt lgkmcnt(0)")
    a("s_add_u32 s12, s12, s21"); a("s_addc_u32 s13, s13, 0")
    for (x, y) in ((0, 1), (2, 3), (0, 2)):
        a(f"v_pk_add_f32 v[{R0+4*x}:{R0+4*x+1}], v[{R0+4*x}:{R0+4*x+1}], v[{R0+4*y}:{R0+4*y+1}]")
        a(f"v_pk_add_f32 v[{R0+4*x+2}:{R0+4*x+3}], v[{R0+4*x+2}:{R0+4*x+3}], v[{R0+4*y+2}:{R0+4*y+3}]")
    for e in range(4): a(f"v_min_u32 v{R0+e}, -2, v{R0+e}")
    a(f"buffer_store_dwordx4 v[{R0}:{R0+3}], v{VT2}, s[12:15], 0 offen sc1")
    stamp(5)
    a("s_endpgm")

    a.label("L_join")
    a("s_load_dwordx2 s[40:41], s[0:1], 96")
    a(f"v_mov_b32 v1, {CTL}")
    a("s_waitcnt lgkmcnt(0)")
    a("s_barrier")
    a(f"ds_read_b32 v2, v1 offset:{O_LAST}")
    a(f"s_mul_i32 s21, s17, {32*YSTRIDE}")
    a("s_add_u32 s40, s40, s21"); a("s_addc_u32 s41, s41, 0"); a(f"s_mov_b32 s42, {32*YSTRIDE}"); a("s_mov_b32 s43, 0x20000")
    a("s_waitcnt lgkmcnt(0)")
    a("v_readfirstlane_b32 s21, v2")
    a("s_cmp_lg_u32 s21, 31")
    a("s_cbranch_scc1 L_join3")
    a("v_lshlrev_b32 v3, 4, v0")
    a("v_add_u32 v4, 2048, v3")
    a("v_cmp_gt_u32 vcc, 32, v0")
    a("v_mov_b32 v5, 0x40000000")
    a("v_cndmask_b32 v4, v5, v4, vcc")
    a(f"s_mov_b32 s27, 0x4000")
    a.label("L_gather")
    G = 16
    for hh in range(8):
        a("s_lshl_b32 s22, s19, 3")
        a(f"s_add_u32 s22, s22, {hh}")
        a("s_cmp_eq_u32 s22, s16")
        a("s_cselect_b32 s23, 0x40000000, 0")
        a(f"s_lshl_b32 s22, s22, {int(math.log2(YSTRIDE))}")
        a("v_add_u32 v6, s23, v3"); a("v_add_u32 v7, s23, v4")
        d = G + 12*hh
        a(f"buffer_load_dwordx4 v[{d}:{d+3}], v6, s[40:43], s22 offen sc1")
        a(f"buffer_load_dwordx4 v[{d+4}:{d+7}], v6, s[40:43], s22 offen offset:1024 sc1")
        a(f"buffer_load_dwordx4 v[{d+8}:{d+11}], v7, s[40:43], s22 offen sc1")
    a("s_waitcnt vmcnt(0)")
    a(f"v_max3_u32 v8, v{G}, v{G+1}, v{G+2}")
    a(f"v_max3_u32 v9, v{G+3}, v{G+4}, v{G+5}")
    for e in range(6, 96, 4):
        a(f"v_max3_u32 v8, v8, v{G+e}, v{G+e+1}")
        if e + 3 < 96: a(f"v_max3_u32 v9, v9, v{G+e+2}, v{G+e+3}")
    a("v_max_u32 v8, v8, v9")
    a("v_cmp_eq_u32 vcc, -1, v8")
    a("s_cmp_eq_u64 vcc, 0")
    a("s_cbranch_scc1 L_gathered")
    a("s_sub_u32 s27, s27, 1")
    a("s_cmp_lg_u32 s27, 0")
    a("s_cbranch_scc1 L_gather")
    a.label("L_gathered")
    stamp(12)
    for (x, y) in ((0, 1), (2, 3), (4, 5), (6, 7), (0, 2), (4, 6), (0, 4)):
        for e in range(0, 12, 2):
            a(f"v_pk_add_f32 v[{G+12*x+e}:{G+12*x+e+1}], v[{G+12*x+e}:{G+12*x+e+1}], v[{G+12*y+e}:{G+12*y+e+1}]")
    a("s_add_u32 s21, s19, 4")
    a("s_mul_i32 s21, s21, 2560")
    a("v_add_u32 v3, s21, v3")
    a(f"ds_write_b128 v3, v[{G}:{G+3}] offset:{YPART}")
    a(f"ds_write_b128 v3, v[{G+4}:{G+7}] offset:{YPART + 1024}")
    a("s_mov_b32 exec_hi, 0")
    a(f"ds_write_b128 v3, v[{G+8}:{G+11}] offset:{YPART + 2048}")
    a("s_mov_b64 exec, -1")
    a.label("L_join3")
    a("s_waitcnt lgkmcnt(0)")
    a("s_barrier")
    a.label("L_end")
    a("s_endpgm")

    lines, nfix = a.finish()
    out = []
    out.append(HEADER.rstrip("\n"))
    out.append("; Override launch geometry by editing the next line (default: block=256,")
    out.append(f"; @launch grid=(256,1,1) block=(512,1,1) lds={LDS_BYTES}")
    out.append('.amdgcn_target "amdgcn-amd-amdhsa--gfx950"')
    out.append(".text"); out.append(f".globl {KN}"); out.append(".p2align 8"); out.append(f".type {KN},@function")
    out += [l if (l.endswith(":") or l.startswith(";")) else "    " + l for l in lines]
    out.append('.section .rodata,"a"'); out.append(".p2align 6"); out.append(f".amdhsa_kernel {KN}")
    out.append("  .amdhsa_next_free_vgpr 256"); out.append("  .amdhsa_next_free_sgpr 102"); out.append("  .amdhsa_accum_offset 256")
    out.append("  .amdhsa_group_segment_fixed_size 0"); out.append("  .amdhsa_kernarg_size 104"); out.append("  .amdhsa_user_sgpr_count 2")
    out.append("  .amdhsa_user_sgpr_kernarg_segment_ptr 1"); out.append("  .amdhsa_system_sgpr_workgroup_id_x 1"); out.append(".end_amdhsa_kernel")
    return "\n".join(out) + "\n", nfix

if __name__ == "__main__":
    kw = eval("dict(%s)" % (sys.argv[2] if len(sys.argv) > 2 else ""))
    s, n = gen(**kw)
    open(sys.argv[1], "w").write(s)
    print("nops inserted:", n, "bytes:", len(s))
```

```python
import sys, math, struct
sys.path.insert(0, "tools")
from asmlib import Asm

KN = "gated_mix__gqa_block_cached__glu_gated_reglu__decode_kernel"

def f2u(x): return struct.unpack("<I", struct.pack("<f", x))[0]

SLOT = 16384; NSLOT = 9
CTL = SLOT * NSLOT
O_LANDED = 0
O_NEXT = 16
O_QCNT = 32
O_QRDY = 36
O_GUCNT = 40
O_LAST = 44
O_QPART = 256
O_QBF = O_QPART + 2048
O_GUPART = O_QBF + 256
O_APART = O_GUPART + 2048
O_END = O_APART + 3072
YPART = 0
LDS_BYTES = CTL + O_END
YSTRIDE = 2048

NT = 128
NCONS = 3
C1 = math.log2(math.e) / math.sqrt(128.0)
LOG2E = math.log2(math.e)

HEADER = open("gated_mix__gqa_block_cached__glu_gated_reglu__decode.s.ref").read().split("; Override launch")[0]

def gen(levels=(20, 24, 16), th=(192, -192), period=12, adapt=True, wflags="nt", kvflags="nt", swq=4, swf=3, rot=True, rotf=False, preload=True, arr=4*123, static_red=None, nosent=False, perturb=None, sentflags="sc1", mapB=False, sched=None, stamps=False, spin_sleep=1):
    a = Asm()
    for n in levels: assert n % 4 == 0 and 16 <= n <= 60
    O_G = 32
    TO = 0x40000
    uid = [0]
    def L(n): uid[0] += 1; return f"L_{n}_{uid[0]}"

    def lds_wait_ge(vaddr, off, sneed, vtmp, stmp, sto, sleep=spin_sleep, signed=True):
        l0 = L("spin"); l1 = L("spun")
        a(f"s_mov_b32 {sto}, {TO}")
        a.label(l0)
        a(f"ds_read_b32 {vtmp}, {vaddr} offset:{off}")
        a("s_waitcnt lgkmcnt(0)")
        a(f"v_readfirstlane_b32 {stmp}, {vtmp}")
        a(f"s_cmp_ge_i32 {stmp}, {sneed}")
        a(f"s_cbranch_scc1 {l1}")
        if sleep: a(f"s_sleep {sleep}")
        a(f"s_sub_u32 {sto}, {sto}, 1")
        a(f"s_cmp_lg_u32 {sto}, 0")
        a(f"s_cbranch_scc1 {l0}")
        a.label(l1)

    def stamp(idx, stmp0=96):
        if not stamps: return
        a(f"s_memrealtime s[{stmp0}:{stmp0+1}]")
        a("s_waitcnt lgkmcnt(0)")
        a(f"v_mov_b32 v252, s{stmp0}")
        a(f"v_mov_b32 v253, {idx*4}")
        a("s_mov_b64 s[98:99], exec")
        a("s_mov_b64 exec, 1")
        a("buffer_store_dword v252, v253, s[92:95], 0 offen")
        a("s_mov_b64 exec, s[98:99]")

    def stamp_s(sidx4, stmp0=96):
        if not stamps: return
        a(f"s_memrealtime s[{stmp0}:{stmp0+1}]")
        a("s_waitcnt lgkmcnt(0)")
        a(f"v_mov_b32 v252, s{stmp0}")
        a(f"v_mov_b32 v253, {sidx4}")
        a("s_mov_b64 s[98:99], exec")
        a("s_mov_b64 exec, 1")
        a("buffer_store_dword v252, v253, s[92:95], 0 offen")
        a("s_mov_b64 exec, s[98:99]")

    def masks(vbase, vlane, vt0, vt1):
        a(f"v_and_b32 {vt0}, 15, {vlane}")
        a(f"v_and_b32 {vt1}, 1, {vlane}")
        a(f"v_sub_u32 {vt1}, 0, {vt1}")
        a(f"v_xor_b32 {vt1}, 0xffff, {vt1}")
        a(f"v_lshrrev_b32 {vt0}, 1, {vt0}")
        for r in range(4):
            a(f"v_cmp_eq_u32 vcc, {r}, {vt0}")
            a(f"v_cndmask_b32 v{vbase+r}, 0, {vt1}, vcc")

    a.label(KN)
    a("s_cmp_ge_u32 s2, 256")
    a("s_cbranch_scc1 L_end")
    a("s_load_dwordx4 s[4:7], s[0:1], 8")
    a("v_lshrrev_b32 v1, 6, v0")
    a("v_and_b32 v0, 63, v0")
    a("s_and_b32 s16, s2, 7")
    a("s_lshl_b32 s16, s16, 2")
    a("s_bfe_u32 s3, s2, 0x20006" if mapB else "s_bfe_u32 s3, s2, 0x20003")
    a("v_readfirstlane_b32 s19, v1")
    a("s_add_u32 s16, s16, s3")
    a("s_bfe_u32 s17, s2, 0x30003" if mapB else "s_lshr_b32 s17, s2, 5")
    a("s_lshl_b32 s18, s17, 5")
    a("s_add_u32 s18, s18, s16")
    if stamps:
        a("s_load_dwordx2 s[92:93], s[0:1], 96")
        a("s_waitcnt lgkmcnt(0)")
        a("s_lshl_b32 s94, s2, 8")
        a("s_add_u32 s92, s92, s94"); a("s_addc_u32 s93, s93, 0")
        a("s_add_u32 s92, s92, 0x400000"); a("s_addc_u32 s93, s93, 0")
        a("s_mov_b32 s94, 256"); a("s_mov_b32 s95, 0x20000")
    a("s_cmp_lg_u32 s19, 0")
    a("s_cbranch_scc1 L_notloader")

    a.c("==== loader wave: K/V stream, LDS-DMA ring")
    a("s_setprio 3")
    if stamps: a("s_mov_b32 s91, 0")
    stamp(0)
    a("v_lshrrev_b32 v8, 4, v0")
    a("v_and_b32 v9, 15, v0")
    for m in range(4):
        a(f"v_add_u32 v10, {4*m}, v8")
        a("v_xor_b32 v10, v10, v9")
        a("v_lshlrev_b32 v10, 4, v10")
        a(f"v_lshl_add_u32 v{2+m}, v8, 8, v10")
    a("v_lshlrev_b32 v6, 4, v0")
    a(f"v_mov_b32 v7, {CTL}")
    a("s_lshr_b32 s20, s18, 12")
    a("s_lshl_b32 s21, s18, 20")
    a("s_mov_b32 s10, 0x100000"); a("s_mov_b32 s11, 0x20000")
    a("s_mov_b32 s14, 0x100000"); a("s_mov_b32 s15, 0x20000")
    a("s_waitcnt lgkmcnt(0)")
    a("s_add_u32 s8, s4, s21"); a("s_addc_u32 s9, s5, s20")
    a("s_add_u32 s12, s6, s21"); a("s_addc_u32 s13, s7, s20")
    def group(grp, sgo, sslot):
        srd = "s[8:11]" if grp < 2 else "s[12:15]"
        a(f"s_add_u32 m0, {sslot}, {grp*4096}")
        a(f"s_add_u32 s24, {sgo}, {(grp&1)*4096}")
        for m in range(4):
            vo = f"v{2+m}" if grp < 2 else "v6"
            a(f"buffer_load_dwordx4 {vo}, {srd}, s24 offen offset:{m*1024} {kvflags} lds")
    a("s_mov_b32 s22, 0"); a("s_mov_b32 s23, 0")
    for grp in range(4): group(grp, "s22", "s23")
    a("s_barrier")
    a("ds_read_b128 v[12:15], v7 offset:%d" % O_NEXT)
    a("s_mov_b32 s25, 1")
    a("s_mov_b32 s22, 8192"); a(f"s_mov_b32 s23, {SLOT}")
    a.label("L_ld_loop")
    a("s_waitcnt lgkmcnt(0)")
    a("v_min3_u32 v9, v12, v13, v14")
    a("v_readfirstlane_b32 s30, v15")
    a("v_readfirstlane_b32 s26, v9")
    a(f"s_add_u32 s26, s26, {NSLOT-1}")
    a("s_cmp_ge_u32 s26, s25")
    a(f"s_cbranch_scc1 L_ld_free")
    a(f"s_mov_b32 s27, {TO}")
    if stamps: a("s_add_u32 s91, s91, 1")
    a.label(f"L_ld_spin")
    a("s_sleep 1")
    a("ds_read_b128 v[12:15], v7 offset:%d" % O_NEXT)
    a("s_waitcnt lgkmcnt(0)")
    a("v_min3_u32 v9, v12, v13, v14")
    a("v_readfirstlane_b32 s26, v9")
    a(f"s_add_u32 s26, s26, {NSLOT-1}")
    a("s_cmp_ge_u32 s26, s25")
    a(f"s_cbranch_scc1 L_ld_free")
    a("s_sub_u32 s27, s27, 1")
    a("s_cmp_lg_u32 s27, 0")
    a(f"s_cbranch_scc1 L_ld_spin")
    a.label(f"L_ld_free")
    if stamps:
        a("s_and_b32 s90, s25, 7"); a("s_cmp_lg_u32 s90, 0"); a(f"s_cbranch_scc1 L_ld_nost")
        a("s_lshr_b32 s90, s25, 3"); a("s_add_u32 s90, s90, 16"); a("s_lshl_b32 s90, s90, 2")
        stamp_s("s90")
        a.label(f"L_ld_nost")
    a("s_lshl_b32 s28, s25, 2")
    lv = list(levels) if (adapt or sched) else [levels[0]]
    if sched:
        a("s_mov_b32 s30, 0")
        for (t0_, lvl) in sched:
            a(f"s_cmp_ge_u32 s25, {t0_}")
            a(f"s_cselect_b32 s30, {lvl}, s30")
    for k in range(1, len(lv)):
        a(f"s_cmp_eq_u32 s30, {k}")
        a(f"s_cbranch_scc1 L_ld_body{k}")
    for k, N in enumerate(lv):
        NG = N // 4
        if k: a.label(f"L_ld_body{k}")
        for grp in range(4):
            a(f"s_waitcnt vmcnt({N-4})")
            group(grp, "s22", "s23")
            a(f"s_add_i32 s29, s28, {grp - NG + 1}")
            a("v_mov_b32 v8, s29")
            a(f"ds_write_b32 v7, v8 offset:{O_LANDED}")
            if grp == 2: a("ds_read_b128 v[12:15], v7 offset:%d" % O_NEXT)
        if k != len(lv) - 1: a("s_branch L_ld_next")
    a.label("L_ld_next")
    a("s_add_u32 s22, s22, 8192")
    a(f"s_add_u32 s23, s23, {SLOT}")
    a(f"s_cmp_ge_u32 s23, {SLOT*NSLOT}")
    a("s_cselect_b32 s23, 0, s23")
    a("s_add_u32 s25, s25, 1")
    a(f"s_cmp_lt_u32 s25, {NT}")
    a(f"s_cbranch_scc1 L_ld_loop")
    NG = max(lv) // 4
    for k in range(NG):
        a(f"s_waitcnt vmcnt({4*(NG-1-k)})")
        a(f"v_mov_b32 v8, {4*NT - NG + 1 + k}")
        a(f"ds_write_b32 v7, v8 offset:{O_LANDED}")
    stamp(1)
    if stamps:
        a("v_mov_b32 v252, s91"); a("v_mov_b32 v253, 60"); a("s_mov_b64 exec, 1")
        a("buffer_store_dword v252, v253, s[92:95], 0 offen"); a("s_mov_b64 exec, -1")
    a("s_setprio 0")
    a("s_branch L_join")

    a.label("L_notloader")
    a("s_cmp_ge_u32 s19, 4")
    a("s_cbranch_scc1 L_side")

    a.c("==== consumer waves")
    Q = 16; KD = 32; VD = 64; AO = 96; S = 128; O = 136; MK = 140; KA = 144; KC = 148
    VA, VC, MS, LS, AL, T0, T1, CT = 152, 153, 154, 155, 156, 157, 158, 159
    a("s_sub_u32 s20, s19, 1")
    a(f"v_mov_b32 v{CT}, {CTL}")
    masks(MK, "v0", f"v{T0}", f"v{T1}")
    a(f"v_lshrrev_b32 v1, 4, v0")
    a(f"v_and_b32 v2, 15, v0")
    for r in range(4):
        a(f"v_add_u32 v3, {4*r}, v1")
        a("v_xor_b32 v3, v3, v2")
        a("v_lshlrev_b32 v3, 4, v3")
        a(f"v_lshl_add_u32 v{KA+r}, v2, 8, v3")
    a("v_lshlrev_b32 v3, 4, v2")
    a(f"v_lshl_add_u32 v{VA}, v1, 10, v3")
    a(f"v_lshl_add_u32 v4, v1, 4, v{CT}")
    a(f"v_mov_b32 v{MS}, 0xff7fffff")
    a(f"v_mov_b32 v{LS}, 0")
    for r in range(4): a(f"v_mov_b32 v{O+r}, 0")
    a(f"s_mov_b32 s21, {f2u(C1):#x}")
    if adapt:
        a("s_load_dwordx2 s[32:33], s[0:1], 88")
        a("s_mul_i32 s31, s2, 171"); a("s_lshr_b32 s31, s31, 11"); a("s_mul_i32 s31, s31, 12"); a("s_sub_u32 s31, s2, s31")
        a("s_mov_b32 s34, 256"); a("s_mov_b32 s35, 0x20000")
        a("s_waitcnt lgkmcnt(0)")
    a("s_barrier")
    a("s_mov_b32 s22, s20")
    a("s_lshl_b32 s23, s20, 14")
    a("s_mov_b32 s28, -1")
    def c_addr():
        a("s_lshl_b32 s24, s22, 2")
        for r in range(4): a(f"v_add_u32 v{KC+r}, s23, v{KA+r}")
        a(f"v_add_u32 v{VC}, s23, v{VA}")
    def c_wait(tag):
        a("s_cmp_ge_i32 s28, s24")
        a(f"s_cbranch_scc1 L_c_{tag}")
        lds_wait_ge(f"v{CT}", O_LANDED, "s24", f"v{T0}", "s28", "s27")
        a.label(f"L_c_{tag}")
    def c_kreads():
        for u in range(2):
            for r in range(4):
                d = KD + (u*4+r)*4
                a(f"ds_read_b128 v[{d}:{d+3}], v{KC+r} offset:{u*4096}")
    def c_qk(waits):
        for u in range(2):
            for r in range(4):
                d = KD + (u*4+r)*4
                if waits: a(f"s_waitcnt lgkmcnt({7-(u*4+r)})")
                c = "0" if r == 0 else f"v[{S+4*u}:{S+4*u+3}]"
                a(f"v_mfma_f32_16x16x32_bf16 v[{S+4*u}:{S+4*u+3}], v[{d}:{d+3}], v[{Q+4*r}:{Q+4*r+3}], {c}")
    def c_softmax():
        a(f"v_max3_f32 v{T0}, v{S}, v{S+1}, v{S+2}")
        a(f"v_max3_f32 v{T1}, v{S+3}, v{S+4}, v{S+5}")
        a(f"v_max3_f32 v{T0}, v{T0}, v{S+6}, v{S+7}")
        a(f"v_max_f32 v{T0}, v{T0}, v{T1}")
        a(f"v_mul_f32 v{T0}, s21, v{T0}")
        a(f"v_max_f32 v{T0}, v{T0}, v{MS}")
        a(f"v_max_f32_dpp v{T0}, v{T0}, v{T0} row_bcast:15 row_mask:0xa bank_mask:0xf")
        a(f"v_max_f32_dpp v{T0}, v{T0}, v{T0} row_bcast:31 row_mask:0xc bank_mask:0xf")
        a(f"v_readlane_b32 s29, v{T0}, 63")
        a(f"v_subrev_f32 v{AL}, s29, v{MS}")
        a(f"v_mov_b32 v{MS}, s29")
        a(f"v_exp_f32 v{AL}, v{AL}")
        for k in range(8): a(f"v_fma_f32 v{S+k}, v{S+k}, s21, -v{MS}")
        for k in range(8): a(f"v_exp_f32 v{S+k}, v{S+k}")
        a(f"v_mul_f32 v{LS}, v{LS}, v{AL}")
        for r in range(4): a(f"v_mul_f32 v{O+r}, v{O+r}, v{AL}")
        for k in range(8):
            a(f"v_cvt_pk_bf16_f32 v{T1}, v{S+k}, v{S+k}")
            a(f"v_add_f32 v{LS}, v{LS}, v{S+k}")
            for r in range(4): a(f"v_and_b32 v{AO+4*k+r}, v{T1}, v{MK+r}")
    def c_vreads():
        for k in range(8):
            u, r = k >> 2, k & 3
            d = VD + 4*k
            a(f"ds_read_b128 v[{d}:{d+3}], v{VC} offset:{8192 + u*4096 + r*256}")
    def c_advance():
        a("s_add_u32 s22, s22, %d" % NCONS)
        a(f"v_mov_b32 v{T0}, s22")
        a("s_lshl_b32 s30, s20, 2")
        a(f"v_add_u32 v{T1}, s30, v{CT}")
        a(f"s_add_u32 s23, s23, {NCONS*SLOT}")
        a(f"s_sub_u32 s30, s23, {NSLOT*SLOT}")
        a(f"s_cmp_ge_u32 s23, {NSLOT*SLOT}")
        a("s_cselect_b32 s23, s30, s23")
    def c_free():
        a(f"ds_write_b32 v{T1}, v{T0} offset:{O_NEXT}")
    def c_pv(waits):
        for k in range(8):
            d = VD + 4*k
            if waits:
                a(f"s_waitcnt lgkmcnt({7-k})")
                if k == 7: c_free()
            a(f"v_mfma_f32_16x16x32_bf16 v[{O}:{O+3}], v[{AO+4*k}:{AO+4*k+3}], v[{d}:{d+3}], v[{O}:{O+3}]")
    def c_checkpoint(tag):
        assert period == 12
        a(f"s_sub_u32 s30, s22, {NCONS}")
        a("s_cmp_lg_u32 s30, s31")
        a(f"s_cbranch_scc1 L_c_nocp{tag}")
        a(f"s_add_u32 s31, s31, {period}")
        a(f"v_mov_b32 v{T0}, 1"); a(f"v_mov_b32 v{T1}, {O_G}")
        a("s_mov_b64 exec, 1")
        a(f"buffer_atomic_add v{T0}, v{T1}, s[32:35], 0 offen sc0")
        a("s_waitcnt vmcnt(0)")
        a("s_mov_b64 exec, -1")
        a(f"v_readfirstlane_b32 s36, v{T0}")
        a("s_add_u32 s37, s30, 1")
        a("s_lshl_b32 s37, s37, 8")
        a(f"s_mul_i32 s36, s36, {period}")
        a("s_sub_i32 s36, s36, s37")
        a("s_mov_b32 s37, 0")
        for k, t in enumerate(th):
            a(f"s_cmp_gt_i32 s36, {t}" if t > 0 else f"s_cmp_lt_i32 s36, {t}")
            a(f"s_cselect_b32 s37, {k+1}, s37")
        a(f"v_mov_b32 v{T0}, s37")
        a(f"ds_write_b32 v{CT}, v{T0} offset:{O_NEXT + 12}")
        if stamps:
            a("s_lshr_b32 s90, s31, 2"); a("s_and_b32 s90, s90, 0xfc"); a("s_sub_u32 s90, s31, 12")
            a("s_mul_i32 s90, s90, 171"); a("s_lshr_b32 s90, s90, 11"); a("s_add_u32 s90, s90, 40"); a("s_lshl_b32 s90, s90, 2")
            a("v_mov_b32 v252, s36"); a("v_mov_b32 v253, s90"); a("s_mov_b64 exec, 1")
            a("buffer_store_dword v252, v253, s[92:95], 0 offen"); a("s_mov_b64 exec, -1")
        a.label(f"L_c_nocp{tag}")
    if preload:
        c_addr()
        a("s_add_u32 s24, s24, 4")
        c_wait("first")
        c_kreads()
        a("s_waitcnt lgkmcnt(0)")
        c_vreads()
        c_advance()
        a("s_waitcnt lgkmcnt(0)")
        c_free()
    lds_wait_ge(f"v{CT}", O_QRDY, "1", f"v{T0}", "s26", "s27")
    stamp(9)
    for r in range(4):
        a(f"ds_read_b128 v[{Q+4*r}:{Q+4*r+3}], v4 offset:{O_QBF + 64*r}")
    if preload:
        a("s_waitcnt lgkmcnt(0)")
        c_qk(False)
        c_softmax()
        c_pv(False)
        if adapt: c_checkpoint("b")
    a.label("L_c_loop")
    c_addr()
    a("s_add_u32 s24, s24, 2")
    c_wait("kok")
    c_kreads()
    c_qk(True)
    a("s_add_u32 s24, s24, 2")
    c_softmax()
    c_wait("vok")
    c_vreads()
    c_advance()
    c_pv(True)
    if adapt: c_checkpoint("a")
    a(f"s_cmp_lt_u32 s22, {NT}")
    a("s_cbranch_scc1 L_c_loop")
    a(f"v_add_f32_dpp v{LS}, v{LS}, v{LS} row_bcast:15 row_mask:0xa bank_mask:0xf")
    a(f"v_add_f32_dpp v{LS}, v{LS}, v{LS} row_bcast:31 row_mask:0xc bank_mask:0xf")
    a(f"v_readlane_b32 s29, v{LS}, 63")
    a("s_lshl_b32 s23, s20, 10")
    a("v_lshrrev_b32 v1, 4, v0"); a("v_and_b32 v2, 15, v0")
    a("v_lshlrev_b32 v1, 4, v1"); a("v_lshl_add_u32 v1, v2, 5, v1")
    a(f"v_add_u32 v1, s23, v1"); a(f"v_add_u32 v1, v1, v{CT}")
    a(f"v_add_u32 v2, s23, v{CT}")
    a(f"v_mov_b32 v{MS+1}, s29")
    a("s_mov_b32 exec_hi, 0")
    a(f"ds_write_b128 v1, v[{O}:{O+3}] offset:{O_APART}")
    a("s_mov_b32 exec_lo, 1")
    a(f"ds_write_b64 v2, v[{MS}:{MS+1}] offset:{O_APART + 512}")
    a("s_mov_b64 exec, -1")
    stamp(2)
    a("s_branch L_join")

    a.label("L_side")
    a.c("==== side waves: q projection, gate, FFN, output projection")
    MKs = 4; A0 = 8; A1 = 52; Y = 12; X = 32; QA = 56; W = 64
    VAD = 60; VO = 62; VT0, VT1, VT2, VT3 = 224, 225, 226, 227; CTs = 228; VG = 229; VG1 = 230
    a("s_sub_u32 s20, s19, 4")
    a("s_mov_b32 s70, 256"); a("s_mov_b32 s71, 0x20000")
    a("s_load_dwordx2 s[44:45], s[0:1], 0")
    a("s_load_dwordx4 s[24:27], s[0:1], 24")
    a("s_load_dwordx4 s[28:31], s[0:1], 48")
    a("s_load_dwordx4 s[32:35], s[0:1], 64")
    a(f"v_mov_b32 v{CTs}, {CTL}")
    a("v_lshrrev_b32 v1, 4, v0")
    a("v_and_b32 v2, 15, v0")
    a("s_cmp_lg_u32 s20, 0")
    a("s_cbranch_scc1 L_s_noinit")
    a("v_mov_b32 v8, 0"); a("v_mov_b32 v9, 0"); a("v_mov_b32 v10, 0"); a("v_mov_b32 v11, 0")
    a(f"ds_write_b128 v{CTs}, v[8:11] offset:0")
    a(f"ds_write_b128 v{CTs}, v[8:11] offset:32")
    a("v_mov_b32 v9, 1"); a("v_mov_b32 v10, 2"); a("v_mov_b32 v11, 0")
    a(f"ds_write_b128 v{CTs}, v[8:11] offset:{O_NEXT}")
    a.label("L_s_noinit")
    a("v_lshlrev_b32 v3, 3, v1")
    a(f"v_lshlrev_b32 v{VT0}, 15, v1")
    a(f"v_lshl_add_u32 v{VT0}, v2, 4, v{VT0}")
    if rot: a("s_lshl_b32 s46, s17, 2"); a("s_add_u32 s46, s46, s20")
    else: a("s_mov_b32 s46, s20")
    for st in range(10):
        a(f"s_add_u32 s21, s46, {4*st}")
        a("s_sub_u32 s22, s21, 40")
        a("s_cmp_ge_u32 s21, 40")
        a(f"s_cselect_b32 s{50+st}, s22, s21")
    a("s_waitcnt lgkmcnt(0)")
    a("s_mul_i32 s21, s17, 1280")
    a("s_add_u32 s4, s44, s21"); a("s_addc_u32 s5, s45, 0"); a("s_mov_b32 s6, 1280"); a("s_mov_b32 s7, 0x20000")
    a("s_lshl_b32 s21, s16, 8")
    a("s_add_u32 s8, s24, s21"); a("s_addc_u32 s9, s25, 0")
    a(f"s_sub_u32 s10, {640*8192}, s21"); a("s_mov_b32 s11, 0x20000")
    for k in range(10):
        a(f"s_lshl_b32 s21, s{50+k}, 5")
        a(f"buffer_load_dwordx2 v[{X+2*k}:{X+2*k+1}], v3, s[4:7], s21 offen")
    def wq_issue(n):
        k, r = n >> 2, n & 3
        a(f"s_lshl_b32 s21, s{50+k}, 17")
        if r: a(f"s_add_u32 s21, s21, {r*8192}")
        a(f"buffer_load_dwordx4 v[{W+4*n}:{W+4*n+3}], v{VT0}, s[8:11], s21 offen {wflags}")
    for n in range(swq): wq_issue(n)
    stamp(6)
    a("s_barrier")
    masks(MKs, "v0", f"v{VT1}", f"v{VT2}")
    a("s_mov_b32 s36, 0x01000100"); a("s_mov_b32 s37, 0x03020302")
    ns = 1 if stamps else 0
    a(f"s_waitcnt vmcnt({swq + ns})")
    stamp(7)
    def gemv_steps(nblk, acc, first_zero, waitfn, postfn=None):
        for k in range(nblk):
            for r in range(4):
                n = 4*k + r
                A = A0 if n % 2 == 0 else A1
                xs = X + 2*k + (r >> 1)
                a(f"v_perm_b32 v{VT1}, v{xs}, v{xs}, s{36 + (r & 1)}")
                for q in range(4): a(f"v_and_b32 v{A+q}, v{VT1}, v{MKs+q}")
                waitfn(n)
                c = "0" if (n == 0 and first_zero) else f"v[{acc}:{acc+3}]"
                a(f"v_mfma_f32_16x16x32_bf16 v[{acc}:{acc+3}], v[{A}:{A+3}], v[{W+4*n}:{W+4*n+3}], {c}")
    def window(issue, total, win):
        def f(n):
            a(f"s_waitcnt vmcnt({min(win, total - n) - 1})")
            if n + win < total: issue(n + win)
        return f
    gemv_steps(10, QA, True, window(wq_issue, 40, swq))
    stamp(8)
    a("v_lshlrev_b32 v3, 4, v1"); a("v_lshl_add_u32 v3, v2, 5, v3")
    a("s_lshl_b32 s21, s20, 9")
    a(f"v_add3_u32 v{VT2}, v3, s21, v{CTs}")
    a("s_mov_b32 exec_hi, 0")
    a(f"ds_write_b128 v{VT2}, v[{QA}:{QA+3}] offset:{O_QPART}")
    a("s_mov_b64 exec, -1")
    a(f"v_mov_b32 v{VT1}, 1")
    a("s_waitcnt lgkmcnt(0)")
    a("s_mov_b64 exec, 1")
    a(f"ds_add_rtn_u32 v{VT1}, v{CTs}, v{VT1} offset:{O_QCNT}")
    a("s_mov_b64 exec, -1")
    a("s_waitcnt lgkmcnt(0)")
    a(f"v_readfirstlane_b32 s21, v{VT1}")
    a("s_cmp_lg_u32 s21, 3")
    a("s_cbranch_scc1 L_s_qdone")
    a(f"v_lshl_add_u32 v{VT2}, v0, 3, v{CTs}")
    for c in range(4):
        a(f"ds_read_b64 v[{W+2*c}:{W+2*c+1}], v{VT2} offset:{O_QPART + 512*c}")
    a("s_waitcnt lgkmcnt(0)")
    a(f"v_add_f32 v{W}, v{W}, v{W+2}"); a(f"v_add_f32 v{W+1}, v{W+1}, v{W+3}")
    a(f"v_add_f32 v{W+4}, v{W+4}, v{W+6}"); a(f"v_add_f32 v{W+5}, v{W+5}, v{W+7}")
    a(f"v_add_f32 v{W}, v{W}, v{W+4}"); a(f"v_add_f32 v{W+1}, v{W+1}, v{W+5}")
    a(f"v_cvt_pk_bf16_f32 v{W}, v{W}, v{W+1}")
    a(f"v_lshl_add_u32 v{VT2}, v0, 2, v{CTs}")
    a(f"ds_write_b32 v{VT2}, v{W} offset:{O_QBF}")
    a(f"v_mov_b32 v{VT1}, 1")
    a("s_waitcnt lgkmcnt(0)")
    a(f"ds_write_b32 v{CTs}, v{VT1} offset:{O_QRDY}")
    a.label("L_s_qdone")
    stamp(3)
    a("s_cmp_lg_u32 s20, 0")
    a("s_cbranch_scc1 L_s_nosent")
    a("s_load_dwordx2 s[64:65], s[0:1], 96")
    a("s_load_dwordx2 s[68:69], s[0:1], 88")
    a("v_lshlrev_b32 v3, 4, v0")
    for e in range(4): a(f"v_mov_b32 v{W+e}, -1")
    a(f"s_mul_i32 s21, s18, {YSTRIDE}")
    a("s_mov_b32 s66, 1280"); a("s_mov_b32 s67, 0x20000")
    a("s_waitcnt lgkmcnt(0)")
    a("s_add_u32 s64, s64, s21"); a("s_addc_u32 s65, s65, 0")
    for q in range(2):
        if not nosent: a(f"buffer_store_dwordx4 v[{W}:{W+3}], v3, s[64:67], 0 offen offset:{1024*q} {sentflags}")
    a("s_waitcnt vmcnt(0)")
    a.label("L_s_nosent")
    a("s_mov_b32 s8, s34"); a("s_mov_b32 s9, s35"); a("s_mov_b32 s10, 1280"); a("s_mov_b32 s11, 0x20000")
    a("v_lshlrev_b32 v3, 4, v0")
    a(f"buffer_load_dwordx4 v[{W}:{W+3}], v3, s[4:7], 0 offen")
    a(f"buffer_load_dwordx4 v[{W+4}:{W+7}], v3, s[4:7], 0 offen offset:1024")
    a(f"buffer_load_dwordx4 v[{W+8}:{W+11}], v3, s[8:11], 0 offen")
    a(f"buffer_load_dwordx4 v[{W+12}:{W+15}], v3, s[8:11], 0 offen offset:1024")
    a(f"v_mov_b32 v{VG}, 0")
    a("s_waitcnt vmcnt(0)")
    for k in range(8):
        xs, wsr = W + k, W + 8 + k
        a(f"v_lshlrev_b32 v{VT0}, 16, v{xs}"); a(f"v_lshlrev_b32 v{VT1}, 16, v{wsr}")
        a(f"v_and_b32 v{VT2}, 0xffff0000, v{xs}"); a(f"v_and_b32 v{VT3}, 0xffff0000, v{wsr}")
        a(f"v_mul_f32 v{VT0}, v{VT0}, v{VT1}"); a(f"v_mul_f32 v{VT2}, v{VT2}, v{VT3}")
        a(f"v_cvt_pk_bf16_f32 v{VT0}, v{VT0}, v{VT2}")
        a(f"v_lshlrev_b32 v{VT1}, 16, v{VT0}"); a(f"v_and_b32 v{VT2}, 0xffff0000, v{VT0}")
        a(f"v_add_f32 v{VG}, v{VG}, v{VT1}"); a(f"v_add_f32 v{VG}, v{VG}, v{VT2}")
    for sh in (1, 2, 4, 8):
        a(f"v_add_f32_dpp v{VG}, v{VG}, v{VG} row_ror:{sh} row_mask:0xf bank_mask:0xf")
    a(f"v_add_f32_dpp v{VG}, v{VG}, v{VG} row_bcast:15 row_mask:0xa bank_mask:0xf")
    a(f"v_add_f32_dpp v{VG}, v{VG}, v{VG} row_bcast:31 row_mask:0xc bank_mask:0xf")
    a(f"v_readlane_b32 s21, v{VG}, 63")
    a(f"v_mov_b32 v{VG}, s21")
    a(f"v_cvt_pk_bf16_f32 v{VG}, v{VG}, v{VG}")
    a(f"v_and_b32 v{VG}, 0xffff0000, v{VG}")
    a(f"v_mul_f32 v{VG}, {f2u(-LOG2E):#x}, v{VG}")
    a(f"v_exp_f32 v{VG}, v{VG}")
    a(f"v_add_f32 v{VG}, 1.0, v{VG}")
    a(f"v_rcp_f32 v{VG}, v{VG}")
    a(f"v_cvt_pk_bf16_f32 v{VG}, v{VG}, v{VG}")
    a(f"v_and_b32 v{VG}, 0xffff0000, v{VG}")
    a(f"v_sub_f32 v{VG1}, 1.0, v{VG}")
    a(f"v_cvt_pk_bf16_f32 v{VG1}, v{VG1}, v{VG1}")
    a(f"v_and_b32 v{VG1}, 0xffff0000, v{VG1}")
    for r in range(20): a(f"v_mov_b32 v{Y+r}, 0")
    a("s_cmp_ge_u32 s16, 27")
    a("s_cbranch_scc1 L_s_noffn")
    if rot and not rotf:
        a("v_lshrrev_b32 v3, 4, v0"); a("v_lshlrev_b32 v3, 3, v3")
        for k in range(10):
            a(f"s_add_u32 s{50+k}, s20, {4*k}")
            a(f"s_lshl_b32 s21, s{50+k}, 5")
            a(f"buffer_load_dwordx2 v[{X+2*k}:{X+2*k+1}], v3, s[4:7], s21 offen")
        a("s_waitcnt vmcnt(0)")
    a("v_cmp_gt_u32 vcc, 8, v2")
    a(f"v_mov_b32 v{VT0}, s30"); a(f"v_mov_b32 v{VT1}, s28")
    a(f"v_cndmask_b32 v{VAD}, v{VT0}, v{VT1}, vcc")
    a(f"v_mov_b32 v{VT0}, s31"); a(f"v_mov_b32 v{VT1}, s29")
    a(f"v_cndmask_b32 v{VAD+1}, v{VT0}, v{VT1}, vcc")
    a(f"s_movk_i32 s21, {4*3456}")
    a(f"v_mul_lo_u32 v{VT0}, v1, s21")
    a(f"v_and_b32 v{VT1}, 7, v2")
    a(f"v_lshl_add_u32 v{VT0}, v{VT1}, 4, v{VT0}")
    a("s_lshl_b32 s21, s16, 7")
    a(f"v_add_u32 v{VT0}, s21, v{VT0}")
    a(f"v_mov_b32 v{VT1}, 0")
    VB = 250
    a(f"v_lshl_add_u64 v[{VB}:{VB+1}], v[{VT0}:{VT1}], 0, v[{VAD}:{VAD+1}]")
    a("s_mov_b32 s38, 6912"); a("s_mov_b32 s39, 0"); a("s_mov_b32 s41, 0")
    def gu_issue(n):
        k, r = n >> 2, n & 3
        if r == 0:
            a(f"s_mul_i32 s40, s{50+k}, {16*3456}")
            a(f"v_lshl_add_u64 v[{VAD}:{VAD+1}], v[{VB}:{VB+1}], 0, s[40:41]")
        a(f"global_load_dwordx4 v[{W+4*n}:{W+4*n+3}], v[{VAD}:{VAD+1}], off offset:{(r&1)*3456} {wflags}")
        if r == 1: a(f"v_lshl_add_u64 v[{VAD}:{VAD+1}], v[{VAD}:{VAD+1}], 0, s[38:39]")
    for n in range(swf): gu_issue(n)
    gemv_steps(10, QA, True, window(gu_issue, 40, swf))
    a("v_lshlrev_b32 v3, 4, v1"); a("v_lshl_add_u32 v3, v2, 5, v3")
    a("s_lshl_b32 s21, s20, 9")
    a(f"v_add3_u32 v{VT2}, v3, s21, v{CTs}")
    a("s_mov_b32 exec_hi, 0")
    a(f"ds_write_b128 v{VT2}, v[{QA}:{QA+3}] offset:{O_GUPART}")
    a("s_mov_b64 exec, -1")
    a(f"v_mov_b32 v{VT1}, 1")
    a("s_waitcnt lgkmcnt(0)")
    a("s_mov_b64 exec, 1")
    a(f"ds_add_u32 v{CTs}, v{VT1} offset:{O_GUCNT}")
    a("s_mov_b64 exec, -1")
    a("s_mov_b32 s8, s32"); a("s_mov_b32 s9, s33"); a(f"s_mov_b32 s10, {1728*1280}"); a("s_mov_b32 s11, 0x20000")
    a("s_lshl_b32 s21, s20, 4")
    a(f"v_lshl_add_u32 v{VT0}, v1, 2, s21")
    a("s_movk_i32 s21, 1280")
    a(f"v_mul_lo_u32 v{VO}, v{VT0}, s21")
    a(f"v_lshl_add_u32 v{VO}, v2, 4, v{VO}")
    a(f"s_mul_i32 s22, s16, {64*1280}")
    def wd_issue(n):
        r, cb = n // 5, n % 5
        a(f"s_add_u32 s21, s22, {r*1280}")
        a(f"buffer_load_dwordx4 v[{W+4*n}:{W+4*n+3}], v{VO}, s[8:11], s21 offen offset:{cb*256} {wflags}")
    for n in range(20):
        if n >= swf: a(f"s_waitcnt vmcnt({swf-1})")
        wd_issue(n)
    lds_wait_ge(f"v{CTs}", O_GUCNT, "4", f"v{VT1}", "s43", "s42")
    a(f"v_lshl_add_u32 v{VT0}, v{VT0}, 2, v{CTs}")
    G0 = 160
    for c in range(4):
        a(f"ds_read_b128 v[{G0+8*c}:{G0+8*c+3}], v{VT0} offset:{O_GUPART + 512*c}")
        a(f"ds_read_b128 v[{G0+8*c+4}:{G0+8*c+7}], v{VT0} offset:{O_GUPART + 512*c + 256}")
    a("s_waitcnt lgkmcnt(0)")
    for e in range(8):
        a(f"v_add_f32 v{G0+e}, v{G0+e}, v{G0+8+e}")
        a(f"v_add_f32 v{G0+16+e}, v{G0+16+e}, v{G0+24+e}")
    for e in range(8): a(f"v_add_f32 v{G0+e}, v{G0+e}, v{G0+16+e}")
    for r in range(4):
        gt, up = G0 + r, G0 + 4 + r
        a(f"v_cvt_pk_bf16_f32 v{VT1}, v{gt}, v{up}")
        a(f"v_lshlrev_b32 v{gt}, 16, v{VT1}")
        a(f"v_and_b32 v{up}, 0xffff0000, v{VT1}")
        a(f"v_max_f32 v{gt}, 0, v{gt}")
        a(f"v_mul_f32 v{gt}, v{gt}, v{up}")
        a(f"v_cvt_pk_bf16_f32 v{gt}, v{gt}, v{gt}")
        a(f"v_and_b32 v{gt}, 0xffff0000, v{gt}")
        a(f"v_mul_f32 v{gt}, v{gt}, v{VG1}")
    for r in range(4):
        A = A0 if r % 2 == 0 else A1
        a(f"v_cvt_pk_bf16_f32 v{VT1}, v{G0+r}, v{G0+r}")
        for q in range(4): a(f"v_and_b32 v{A+q}, v{VT1}, v{MKs+q}")
        for cb in range(5):
            n = 5*r + cb
            if n == 0: a("s_waitcnt vmcnt(0)")
            a(f"v_mfma_f32_16x16x32_bf16 v[{Y+4*cb}:{Y+4*cb+3}], v[{A}:{A+3}], v[{W+4*n}:{W+4*n+3}], v[{Y+4*cb}:{Y+4*cb+3}]")
    a.label("L_s_noffn")
    a("s_mov_b32 s8, s26"); a("s_mov_b32 s9, s27"); a(f"s_mov_b32 s10, {4096*1280}"); a("s_mov_b32 s11, 0x20000")
    a("s_lshl_b32 s21, s20, 5")
    a(f"v_lshl_add_u32 v{VT0}, v1, 2, s21")
    a("s_movk_i32 s21, 1280")
    a(f"v_mul_lo_u32 v{VO}, v{VT0}, s21")
    a(f"v_lshl_add_u32 v{VO}, v2, 4, v{VO}")
    a(f"s_mul_i32 s22, s16, {128*1280}")
    for n in range(40):
        k, r, cb = n // 20, (n // 5) % 4, n % 5
        if n >= swf: a(f"s_waitcnt vmcnt({swf-1})")
        a(f"s_add_u32 s21, s22, {(16*k + r)*1280}")
        a(f"buffer_load_dwordx4 v[{W+4*n}:{W+4*n+3}], v{VO}, s[8:11], s21 offen offset:{cb*256} {wflags}")
    a("s_waitcnt vmcnt(0)")
    stamp(4)
    a("s_cmp_lg_u32 s20, 0")
    a("s_cbranch_scc1 L_s_noarr")
    if static_red is None:
        lds_wait_ge(f"v{CTs}", O_LANDED, str(arr), f"v{VT1}", "s43", "s42", sleep=8)
        a("s_lshl_b32 s21, s17, 2")
        a(f"v_mov_b32 v{VT2}, s21"); a(f"v_mov_b32 v{VT1}, 1")
        a("s_mov_b64 exec, 1")
        a(f"buffer_atomic_add v{VT1}, v{VT2}, s[68:71], 0 offen sc0")
        a("s_waitcnt vmcnt(0)")
        a(f"ds_write_b32 v{CTs}, v{VT1} offset:{O_LAST}")
        a("s_mov_b64 exec, -1")
    else:
        a(f"s_cmp_eq_u32 s16, {static_red}")
        a("s_cselect_b32 s21, 31, 0")
        a(f"v_mov_b32 v{VT1}, s21")
        a(f"ds_write_b32 v{CTs}, v{VT1} offset:{O_LAST}")
    a("s_waitcnt lgkmcnt(0)")
    a.label("L_s_noarr")
    a("s_barrier")
    stamp(10)
    a(f"v_lshl_add_u32 v{VT0}, v{VT0}, 2, v{CTs}")
    M0r = 232
    for c in range(3):
        a(f"ds_read_b64 v[{M0r+2*c}:{M0r+2*c+1}], v{CTs} offset:{O_APART + 1024*c + 512}")
    OP = 32
    for c in range(3):
        for k in range(2):
            d = OP + (c*2 + k)*4
            if d + 3 < A1:
                pass
            a(f"ds_read_b128 v[{d}:{d+3}], v{VT0} offset:{O_APART + 1024*c + 64*k}")
    a("s_waitcnt lgkmcnt(6)")
    a(f"v_max3_f32 v{VT1}, v{M0r}, v{M0r+2}, v{M0r+4}")
    for c in range(3): a(f"v_sub_f32 v{M0r+2*c}, v{M0r+2*c}, v{VT1}")
    for c in range(3): a(f"v_exp_f32 v{M0r+2*c}, v{M0r+2*c}")
    a(f"v_mul_f32 v{VT1}, v{M0r}, v{M0r+1}")
    a(f"v_fma_f32 v{VT1}, v{M0r+2}, v{M0r+3}, v{VT1}")
    a(f"v_fma_f32 v{VT1}, v{M0r+4}, v{M0r+5}, v{VT1}")
    a(f"v_rcp_f32 v{VT1}, v{VT1}")
    a(f"v_mul_f32 v{VT1}, v{VT1}, v{VG}")
    for c in range(3): a(f"v_mul_f32 v{M0r+2*c}, v{M0r+2*c}, v{VT1}")
    a("s_waitcnt lgkmcnt(0)")
    OV = 240
    for k in range(2):
        for r in range(4):
            e = OV + 4*k + r
            a(f"v_mul_f32 v{e}, v{OP + k*4 + r}, v{M0r}")
            a(f"v_fma_f32 v{e}, v{OP + (2+k)*4 + r}, v{M0r+2}, v{e}")
            a(f"v_fma_f32 v{e}, v{OP + (4+k)*4 + r}, v{M0r+4}, v{e}")
    AA = [32, 36, 40, 44]
    for k in range(2):
        for r in range(4):
            n0 = 4*k + r
            A = AA[n0 % 4]
            a(f"v_cvt_pk_bf16_f32 v{VT1}, v{OV+n0}, v{OV+n0}")
            for q in range(4): a(f"v_and_b32 v{A+q}, v{VT1}, v{MKs+q}")
            for cb in range(5):
                n = n0*5 + cb
                a(f"v_mfma_f32_16x16x32_bf16 v[{Y+4*cb}:{Y+4*cb+3}], v[{A}:{A+3}], v[{W+4*n}:{W+4*n+3}], v[{Y+4*cb}:{Y+4*cb+3}]")
    a("v_lshlrev_b32 v3, 4, v1"); a("v_lshl_add_u32 v3, v2, 5, v3")
    a("s_mul_i32 s21, s20, 2560")
    a(f"v_add_u32 v{VT2}, s21, v3")
    a("s_mov_b32 exec_hi, 0")
    for cb in range(5):
        a(f"ds_write_b128 v{VT2}, v[{Y+4*cb}:{Y+4*cb+3}] offset:{YPART + 512*cb}")
    a("s_mov_b64 exec, -1")
    a("s_waitcnt lgkmcnt(0)")
    stamp(11)
    a("s_barrier")
    stamp(13)
    a("s_cmp_ge_u32 s20, 3")
    a("s_cbranch_scc1 L_end")
    a(f"ds_read_b32 v{VT1}, v{CTs} offset:{O_LAST}")
    a("s_lshl_b32 s21, s20, 10")
    a(f"v_lshl_add_u32 v{VT2}, v0, 4, s21")
    R0 = 64
    for c in range(4):
        a(f"ds_read_b128 v[{R0+4*c}:{R0+4*c+3}], v{VT2} offset:{YPART + 2560*c}")
    a("s_waitcnt lgkmcnt(4)")
    a(f"v_readfirstlane_b32 s22, v{VT1}")
    a("s_cmp_lg_u32 s22, 31")
    a("s_cbranch_scc1 L_pub")
    a("s_load_dwordx2 s[12:13], s[0:1], 80")
    for c in range(4, 8):
        a(f"ds_read_b128 v[{R0+4*c}:{R0+4*c+3}], v{VT2} offset:{YPART + 2560*c}")
    a("s_mul_i32 s21, s17, 1280")
    a("s_mov_b32 s14, 1280"); a("s_mov_b32 s15, 0x20000")
    a(f"v_lshrrev_b32 v{VT2}, 1, v{VT2}")
    a("s_waitcnt lgkmcnt(0)")
    a("s_add_u32 s12, s12, s21"); a("s_addc_u32 s13, s13, 0")
    for (x, y) in ((0, 1), (2, 3), (4, 5), (6, 7), (0, 2), (4, 6)):
        a(f"v_pk_add_f32 v[{R0+4*x}:{R0+4*x+1}], v[{R0+4*x}:{R0+4*x+1}], v[{R0+4*y}:{R0+4*y+1}]")
        a(f"v_pk_add_f32 v[{R0+4*x+2}:{R0+4*x+3}], v[{R0+4*x+2}:{R0+4*x+3}], v[{R0+4*y+2}:{R0+4*y+3}]")
    a(f"v_cvt_pk_bf16_f32 v{R0}, v{R0}, v{R0+1}")
    a(f"v_cvt_pk_bf16_f32 v{R0+2}, v{R0+2}, v{R0+3}")
    a(f"v_and_b32 v{R0+1}, 0xffff0000, v{R0}"); a(f"v_lshlrev_b32 v{R0}, 16, v{R0}")
    a(f"v_and_b32 v{R0+3}, 0xffff0000, v{R0+2}"); a(f"v_lshlrev_b32 v{R0+2}, 16, v{R0+2}")
    a(f"v_pk_add_f32 v[{R0}:{R0+1}], v[{R0}:{R0+1}], v[{R0+16}:{R0+17}]")
    a(f"v_pk_add_f32 v[{R0+2}:{R0+3}], v[{R0+2}:{R0+3}], v[{R0+18}:{R0+19}]")
    if perturb:
        for e in range(4): a(f"v_mul_f32 v{R0+e}, {f2u(1.0 + perturb):#x}, v{R0+e}")
    a(f"v_cvt_pk_bf16_f32 v{R0}, v{R0}, v{R0+1}")
    a(f"v_cvt_pk_bf16_f32 v{R0+1}, v{R0+2}, v{R0+3}")
    a(f"buffer_store_dwordx2 v[{R0}:{R0+1}], v{VT2}, s[12:15], 0 offen")
    stamp(5)
    a("s_endpgm")
    a.label("L_pub")
    a("s_load_dwordx2 s[12:13], s[0:1], 96")
    a(f"s_mul_i32 s21, s18, {YSTRIDE}")
    a("s_mov_b32 s14, 1280"); a("s_mov_b32 s15, 0x20000")
    a(f"v_lshrrev_b32 v{VT2}, 1, v{VT2}")
    a("s_waitcnt lgkmcnt(0)")
    a("s_add_u32 s12, s12, s21"); a("s_addc_u32 s13, s13, 0")
    for (x, y) in ((0, 1), (2, 3), (0, 2)):
        a(f"v_pk_add_f32 v[{R0+4*x}:{R0+4*x+1}], v[{R0+4*x}:{R0+4*x+1}], v[{R0+4*y}:{R0+4*y+1}]")
        a(f"v_pk_add_f32 v[{R0+4*x+2}:{R0+4*x+3}], v[{R0+4*x+2}:{R0+4*x+3}], v[{R0+4*y+2}:{R0+4*y+3}]")
    a(f"v_cvt_pk_bf16_f32 v{R0}, v{R0}, v{R0+1}")
    a(f"v_cvt_pk_bf16_f32 v{R0+1}, v{R0+2}, v{R0+3}")
    for e in range(2): a(f"v_min_u32 v{R0+e}, -2, v{R0+e}")
    a(f"buffer_store_dwordx2 v[{R0}:{R0+1}], v{VT2}, s[12:15], 0 offen sc1")
    stamp(5)
    a("s_endpgm")

    a.label("L_join")
    a("s_load_dwordx2 s[40:41], s[0:1], 96")
    a(f"v_mov_b32 v1, {CTL}")
    a("s_waitcnt lgkmcnt(0)")
    a("s_barrier")
    a(f"ds_read_b32 v2, v1 offset:{O_LAST}")
    a(f"s_mul_i32 s21, s17, {32*YSTRIDE}")
    a("s_add_u32 s40, s40, s21"); a("s_addc_u32 s41, s41, 0"); a(f"s_mov_b32 s42, {32*YSTRIDE}"); a("s_mov_b32 s43, 0x20000")
    a("s_waitcnt lgkmcnt(0)")
    a("v_readfirstlane_b32 s21, v2")
    a("s_cmp_lg_u32 s21, 31")
    a("s_cbranch_scc1 L_join3")
    a("v_lshrrev_b32 v1, 4, v0"); a("v_and_b32 v2, 15, v0")
    a(f"v_lshlrev_b32 v3, {int(math.log2(YSTRIDE))}, v1"); a("v_lshl_add_u32 v3, v2, 4, v3")
    a("s_lshl_b32 s22, s19, 3")
    for n in range(2):
        a(f"s_add_u32 s23, s22, {4*n}")
        a("v_add_u32 v4, s23, v1")
        a("v_cmp_eq_u32 vcc, s16, v4")
        a("v_mov_b32 v5, 0x40000000")
        a(f"v_cndmask_b32 v{6+n}, v3, v5, vcc")
    masks(8, "v0", "v4", "v5")
    for r in range(4): a(f"v_and_b32 v{8+r}, 0x3f803f80, v{8+r}")
    a(f"s_mov_b32 s27, 0x4000")
    a.label("L_gather")
    G = 16
    for n in range(2):
        a(f"s_add_u32 s23, s22, {4*n}"); a(f"s_lshl_b32 s23, s23, {int(math.log2(YSTRIDE))}")
        for cb in range(5):
            d = G + 4*(5*n + cb)
            a(f"buffer_load_dwordx4 v[{d}:{d+3}], v{6+n}, s[40:43], s23 offen offset:{256*cb} sc1")
    a("s_waitcnt vmcnt(0)")
    a(f"v_max3_u32 v4, v{G}, v{G+1}, v{G+2}")
    a(f"v_max3_u32 v5, v{G+3}, v{G+4}, v{G+5}")
    for e in range(6, 40, 4):
        a(f"v_max3_u32 v4, v4, v{G+e}, v{G+e+1}")
        if e + 3 < 40: a(f"v_max3_u32 v5, v5, v{G+e+2}, v{G+e+3}")
    a("v_max_u32 v4, v4, v5")
    a("v_cmp_eq_u32 vcc, -1, v4")
    a("s_cmp_eq_u64 vcc, 0")
    a("s_cbranch_scc1 L_gathered")
    a("s_sub_u32 s27, s27, 1")
    a("s_cmp_lg_u32 s27, 0")
    a("s_cbranch_scc1 L_gather")
    a.label("L_gathered")
    stamp(12)
    D = 64
    for n in range(2):
        for cb in range(5):
            d = G + 4*(5*n + cb)
            c = "0" if n == 0 else f"v[{D+4*cb}:{D+4*cb+3}]"
            a(f"v_mfma_f32_16x16x32_bf16 v[{D+4*cb}:{D+4*cb+3}], v[8:11], v[{d}:{d+3}], {c}")
    a("v_lshlrev_b32 v3, 4, v1"); a("v_lshl_add_u32 v3, v2, 5, v3")
    a("s_add_u32 s21, s19, 4")
    a("s_mul_i32 s21, s21, 2560")
    a("v_add_u32 v3, s21, v3")
    a("s_mov_b32 exec_hi, 0")
    for cb in range(5):
        a(f"ds_write_b128 v3, v[{D+4*cb}:{D+4*cb+3}] offset:{YPART + 512*cb}")
    a("s_mov_b64 exec, -1")
    a.label("L_join3")
    a("s_waitcnt lgkmcnt(0)")
    a("s_barrier")
    a.label("L_end")
    a("s_endpgm")

    lines, nfix = a.finish()
    out = []
    out.append(HEADER.rstrip("\n"))
    out.append("; Override launch geometry by editing the next line (default: block=256,")
    out.append(f"; @launch grid=(256,1,1) block=(512,1,1) lds={LDS_BYTES}")
    out.append('.amdgcn_target "amdgcn-amd-amdhsa--gfx950"')
    out.append(".text"); out.append(f".globl {KN}"); out.append(".p2align 8"); out.append(f".type {KN},@function")
    out += [l if (l.endswith(":") or l.startswith(";")) else "    " + l for l in lines]
    out.append('.section .rodata,"a"'); out.append(".p2align 6"); out.append(f".amdhsa_kernel {KN}")
    out.append("  .amdhsa_next_free_vgpr 256"); out.append("  .amdhsa_next_free_sgpr 102"); out.append("  .amdhsa_accum_offset 256")
    out.append("  .amdhsa_group_segment_fixed_size 0"); out.append("  .amdhsa_kernarg_size 104"); out.append("  .amdhsa_user_sgpr_count 2")
    out.append("  .amdhsa_user_sgpr_kernarg_segment_ptr 1"); out.append("  .amdhsa_system_sgpr_workgroup_id_x 1"); out.append(".end_amdhsa_kernel")
    return "\n".join(out) + "\n", nfix

if __name__ == "__main__":
    kw = eval("dict(%s)" % (sys.argv[2] if len(sys.argv) > 2 else ""))
    s, n = gen(**kw)
    open(sys.argv[1], "w").write(s)
    print("nops inserted:", n, "bytes:", len(s))
```

```python
import sys, math, struct
sys.path.insert(0, "tools")
from asmlib import Asm

KN = "gated_mix__gqa_block_cached__glu_gated_reglu__decode_kernel"

def f2u(x): return struct.unpack("<I", struct.pack("<f", x))[0]

SLOT = 16384; NSLOT = 9
CTL = SLOT * NSLOT
O_LANDED = 0
O_NEXT = 16
O_QCNT = 32
O_QRDY = 36
O_GUCNT = 40
O_LAST = 44
O_MLCNT = 48
O_QPART = 256
O_QBF = O_QPART + 2048
O_GUPART = O_QBF + 256
O_APART = O_GUPART + 2048
O_END = O_APART + 3072
YPART = 0
LDS_BYTES = CTL + O_END
YSTRIDE = 2048

NT = 128
NCONS = 3
C1 = math.log2(math.e) / math.sqrt(128.0)
LOG2E = math.log2(math.e)

HEADER = open("gated_mix__gqa_block_cached__glu_gated_reglu__decode.s.ref").read().split("; Override launch")[0]

def gen(levels=(20, 24, 16), th=(192, -192), period=12, adapt=True, wflags="nt", kvflags="nt", swq=4, swf=3, rot=True, rotf=False, preload=True, arr=4*123, static_red=None, nosent=False, pipepoll=True, klast=True, cntshift=2, outflags="", earlyml=True, perturb=None, sentflags="sc1", mapB=False, sched=None, stamps=False, spin_sleep=1):
    a = Asm()
    levels = [tuple(n) if isinstance(n, (tuple, list)) else (n,)*4 for n in levels]
    for lv_ in levels:
        for n in lv_: assert n % 4 == 0 and 12 <= n <= 60
    O_G = 32
    TO = 0x40000
    uid = [0]
    def L(n): uid[0] += 1; return f"L_{n}_{uid[0]}"

    def lds_wait_ge(vaddr, off, sneed, vtmp, stmp, sto, sleep=spin_sleep, signed=True):
        l0 = L("spin"); l1 = L("spun")
        a(f"s_mov_b32 {sto}, {TO}")
        a.label(l0)
        a(f"ds_read_b32 {vtmp}, {vaddr} offset:{off}")
        a("s_waitcnt lgkmcnt(0)")
        a(f"v_readfirstlane_b32 {stmp}, {vtmp}")
        a(f"s_cmp_ge_i32 {stmp}, {sneed}")
        a(f"s_cbranch_scc1 {l1}")
        if sleep: a(f"s_sleep {sleep}")
        a(f"s_sub_u32 {sto}, {sto}, 1")
        a(f"s_cmp_lg_u32 {sto}, 0")
        a(f"s_cbranch_scc1 {l0}")
        a.label(l1)

    def stamp(idx, stmp0=96):
        if not stamps: return
        a(f"s_memrealtime s[{stmp0}:{stmp0+1}]")
        a("s_waitcnt lgkmcnt(0)")
        a(f"v_mov_b32 v252, s{stmp0}")
        a(f"v_mov_b32 v253, {idx*4}")
        a("s_mov_b64 s[98:99], exec")
        a("s_mov_b64 exec, 1")
        a("buffer_store_dword v252, v253, s[92:95], 0 offen")
        a("s_mov_b64 exec, s[98:99]")

    def stamp_s(sidx4, stmp0=96):
        if not stamps: return
        a(f"s_memrealtime s[{stmp0}:{stmp0+1}]")
        a("s_waitcnt lgkmcnt(0)")
        a(f"v_mov_b32 v252, s{stmp0}")
        a(f"v_mov_b32 v253, {sidx4}")
        a("s_mov_b64 s[98:99], exec")
        a("s_mov_b64 exec, 1")
        a("buffer_store_dword v252, v253, s[92:95], 0 offen")
        a("s_mov_b64 exec, s[98:99]")

    def masks(vbase, vlane, vt0, vt1):
        a(f"v_and_b32 {vt0}, 15, {vlane}")
        a(f"v_and_b32 {vt1}, 1, {vlane}")
        a(f"v_sub_u32 {vt1}, 0, {vt1}")
        a(f"v_xor_b32 {vt1}, 0xffff, {vt1}")
        a(f"v_lshrrev_b32 {vt0}, 1, {vt0}")
        for r in range(4):
            a(f"v_cmp_eq_u32 vcc, {r}, {vt0}")
            a(f"v_cndmask_b32 v{vbase+r}, 0, {vt1}, vcc")

    a.label(KN)
    a("s_cmp_ge_u32 s2, 256")
    a("s_cbranch_scc1 L_end")
    a("s_load_dwordx4 s[4:7], s[0:1], 8")
    a("v_lshrrev_b32 v1, 6, v0")
    a("v_and_b32 v0, 63, v0")
    a("s_and_b32 s16, s2, 7")
    a("s_lshl_b32 s16, s16, 2")
    a("s_bfe_u32 s3, s2, 0x20006" if mapB else "s_bfe_u32 s3, s2, 0x20003")
    a("v_readfirstlane_b32 s19, v1")
    a("s_add_u32 s16, s16, s3")
    a("s_bfe_u32 s17, s2, 0x30003" if mapB else "s_lshr_b32 s17, s2, 5")
    a("s_lshl_b32 s18, s17, 5")
    a("s_add_u32 s18, s18, s16")
    if stamps:
        a("s_load_dwordx2 s[92:93], s[0:1], 96")
        a("s_waitcnt lgkmcnt(0)")
        a("s_lshl_b32 s94, s2, 8")
        a("s_add_u32 s92, s92, s94"); a("s_addc_u32 s93, s93, 0")
        a("s_add_u32 s92, s92, 0x400000"); a("s_addc_u32 s93, s93, 0")
        a("s_mov_b32 s94, 256"); a("s_mov_b32 s95, 0x20000")
    a("s_cmp_lg_u32 s19, 0")
    a("s_cbranch_scc1 L_notloader")

    a.c("==== loader wave: K/V stream, LDS-DMA ring")
    a("s_setprio 3")
    if stamps: a("s_mov_b32 s91, 0")
    stamp(0)
    a("v_lshrrev_b32 v8, 4, v0")
    a("v_and_b32 v9, 15, v0")
    for m in range(4):
        a(f"v_add_u32 v10, {4*m}, v8")
        a("v_xor_b32 v10, v10, v9")
        a("v_lshlrev_b32 v10, 4, v10")
        a(f"v_lshl_add_u32 v{2+m}, v8, 8, v10")
    a("v_lshlrev_b32 v6, 4, v0")
    a(f"v_mov_b32 v7, {CTL}")
    a("s_lshr_b32 s20, s18, 12")
    a("s_lshl_b32 s21, s18, 20")
    a("s_mov_b32 s10, 0x100000"); a("s_mov_b32 s11, 0x20000")
    a("s_mov_b32 s14, 0x100000"); a("s_mov_b32 s15, 0x20000")
    a("s_waitcnt lgkmcnt(0)")
    a("s_add_u32 s8, s4, s21"); a("s_addc_u32 s9, s5, s20")
    a("s_add_u32 s12, s6, s21"); a("s_addc_u32 s13, s7, s20")
    def group(grp, sgo, sslot):
        srd = "s[8:11]" if grp < 2 else "s[12:15]"
        a(f"s_add_u32 m0, {sslot}, {grp*4096}")
        a(f"s_add_u32 s24, {sgo}, {(grp&1)*4096}")
        for m in range(4):
            vo = f"v{2+m}" if grp < 2 else "v6"
            a(f"buffer_load_dwordx4 {vo}, {srd}, s24 offen offset:{m*1024} {kvflags} lds")
    a("s_mov_b32 s22, 0"); a("s_mov_b32 s23, 0")
    for grp in range(4): group(grp, "s22", "s23")
    a("s_barrier")
    a("ds_read_b128 v[12:15], v7 offset:%d" % O_NEXT)
    a("s_mov_b32 s25, 1")
    a("s_mov_b32 s22, 8192"); a(f"s_mov_b32 s23, {SLOT}")
    a.label("L_ld_loop")
    a("s_waitcnt lgkmcnt(0)")
    a("v_min3_u32 v9, v12, v13, v14")
    a("v_readfirstlane_b32 s30, v15")
    a("v_readfirstlane_b32 s26, v9")
    a(f"s_add_u32 s26, s26, {NSLOT-1}")
    a("s_cmp_ge_u32 s26, s25")
    a(f"s_cbranch_scc1 L_ld_free")
    a(f"s_mov_b32 s27, {TO}")
    if stamps: a("s_add_u32 s91, s91, 1")
    a.label(f"L_ld_spin")
    a("s_sleep 1")
    a("ds_read_b128 v[12:15], v7 offset:%d" % O_NEXT)
    a("s_waitcnt lgkmcnt(0)")
    a("v_min3_u32 v9, v12, v13, v14")
    a("v_readfirstlane_b32 s26, v9")
    a(f"s_add_u32 s26, s26, {NSLOT-1}")
    a("s_cmp_ge_u32 s26, s25")
    a(f"s_cbranch_scc1 L_ld_free")
    a("s_sub_u32 s27, s27, 1")
    a("s_cmp_lg_u32 s27, 0")
    a(f"s_cbranch_scc1 L_ld_spin")
    a.label(f"L_ld_free")
    if stamps:
        a("s_and_b32 s90, s25, 7"); a("s_cmp_lg_u32 s90, 0"); a(f"s_cbranch_scc1 L_ld_nost")
        a("s_lshr_b32 s90, s25, 3"); a("s_add_u32 s90, s90, 16"); a("s_lshl_b32 s90, s90, 2")
        stamp_s("s90")
        a.label(f"L_ld_nost")
    a("s_lshl_b32 s28, s25, 2")
    lv = list(levels) if (adapt or sched) else [levels[0]]
    if sched:
        a("s_mov_b32 s30, 0")
        for (t0_, lvl) in sched:
            a(f"s_cmp_ge_u32 s25, {t0_}")
            a(f"s_cselect_b32 s30, {lvl}, s30")
    for k in range(1, len(lv)):
        a(f"s_cmp_eq_u32 s30, {k}")
        a(f"s_cbranch_scc1 L_ld_body{k}")
    for k, Ns in enumerate(lv):
        if k: a.label(f"L_ld_body{k}")
        for grp in range(4):
            N = Ns[grp]; NG = N // 4
            a(f"s_waitcnt vmcnt({N-4})")
            group(grp, "s22", "s23")
            a(f"s_add_i32 s29, s28, {grp - NG + 1}")
            a("v_mov_b32 v8, s29")
            a(f"ds_write_b32 v7, v8 offset:{O_LANDED}")
            if grp == 2: a("ds_read_b128 v[12:15], v7 offset:%d" % O_NEXT)
        if k != len(lv) - 1: a("s_branch L_ld_next")
    a.label("L_ld_next")
    a("s_add_u32 s22, s22, 8192")
    a(f"s_add_u32 s23, s23, {SLOT}")
    a(f"s_cmp_ge_u32 s23, {SLOT*NSLOT}")
    a("s_cselect_b32 s23, 0, s23")
    a("s_add_u32 s25, s25, 1")
    a(f"s_cmp_lt_u32 s25, {NT-2 if klast else NT}")
    a(f"s_cbranch_scc1 L_ld_loop")
    if klast:
        a(f"s_mov_b32 s27, {TO}")
        a.label("L_ld_spin2")
        a("ds_read_b128 v[12:15], v7 offset:%d" % O_NEXT)
        a("s_waitcnt lgkmcnt(0)")
        a("v_min3_u32 v9, v12, v13, v14")
        a("v_readfirstlane_b32 s26, v9")
        a(f"s_cmp_ge_u32 s26, {NT - NSLOT}")
        a("s_cbranch_scc1 L_ld_free2")
        a("s_sub_u32 s27, s27, 1")
        a("s_cmp_lg_u32 s27, 0")
        a("s_cbranch_scc1 L_ld_spin2")
        a.label("L_ld_free2")
        a(f"s_add_u32 s32, s22, 8192")
        a(f"s_add_u32 s33, s23, {SLOT}")
        a(f"s_cmp_ge_u32 s33, {SLOT*NSLOT}")
        a("s_cselect_b32 s33, 0, s33")
        NL = lv[-1][0]; NGl = NL // 4
        order = [(0, "s22", "s23"), (1, "s22", "s23"), (0, "s32", "s33"), (1, "s32", "s33"), (2, "s22", "s23"), (3, "s22", "s23"), (2, "s32", "s33"), (3, "s32", "s33")]
        for n, (grp, so, sl) in enumerate(order):
            a(f"s_waitcnt vmcnt({NL-4})")
            group(grp, so, sl)
            a(f"v_mov_b32 v8, {4*(NT-2) + n - NGl + 1}")
            a(f"ds_write_b32 v7, v8 offset:{O_LANDED}")
    NG = max(max(x) for x in lv) // 4
    for k in range(NG):
        a(f"s_waitcnt vmcnt({4*(NG-1-k)})")
        a(f"v_mov_b32 v8, {4*NT - NG + 1 + k}")
        a(f"ds_write_b32 v7, v8 offset:{O_LANDED}")
    stamp(1)
    if stamps:
        a("v_mov_b32 v252, s91"); a("v_mov_b32 v253, 60"); a("s_mov_b64 exec, 1")
        a("buffer_store_dword v252, v253, s[92:95], 0 offen"); a("s_mov_b64 exec, -1")
    a("s_setprio 0")
    a("s_branch L_join")

    a.label("L_notloader")
    a("s_cmp_ge_u32 s19, 4")
    a("s_cbranch_scc1 L_side")

    a.c("==== consumer waves")
    Q = 16; KD = 32; VD = 64; AO = 96; S = 128; O = 136; MK = 140; KA = 144; KC = 148
    VA, VC, MS, LS, AL, T0, T1, CT = 152, 153, 154, 155, 156, 157, 158, 159
    a("s_sub_u32 s20, s19, 1")
    a(f"v_mov_b32 v{CT}, {CTL}")
    masks(MK, "v0", f"v{T0}", f"v{T1}")
    a(f"v_lshrrev_b32 v1, 4, v0")
    a(f"v_and_b32 v2, 15, v0")
    for r in range(4):
        a(f"v_add_u32 v3, {4*r}, v1")
        a("v_xor_b32 v3, v3, v2")
        a("v_lshlrev_b32 v3, 4, v3")
        a(f"v_lshl_add_u32 v{KA+r}, v2, 8, v3")
    a("v_lshlrev_b32 v3, 4, v2")
    a(f"v_lshl_add_u32 v{VA}, v1, 10, v3")
    a(f"v_lshl_add_u32 v4, v1, 4, v{CT}")
    a(f"v_mov_b32 v{MS}, 0xff7fffff")
    a(f"v_mov_b32 v{LS}, 0")
    for r in range(4): a(f"v_mov_b32 v{O+r}, 0")
    a(f"s_mov_b32 s21, {f2u(C1):#x}")
    if adapt:
        a("s_load_dwordx2 s[32:33], s[0:1], 88")
        a("s_mul_i32 s31, s2, 171"); a("s_lshr_b32 s31, s31, 11"); a("s_mul_i32 s31, s31, 12"); a("s_sub_u32 s31, s2, s31")
        a("s_mov_b32 s34, 256"); a("s_mov_b32 s35, 0x20000")
        a("s_waitcnt lgkmcnt(0)")
    a("s_barrier")
    a("s_mov_b32 s22, s20")
    a("s_lshl_b32 s23, s20, 14")
    a("s_mov_b32 s28, -1")
    def c_addr():
        a("s_lshl_b32 s24, s22, 2")
        for r in range(4): a(f"v_add_u32 v{KC+r}, s23, v{KA+r}")
        a(f"v_add_u32 v{VC}, s23, v{VA}")
    def c_wait(tag):
        a("s_cmp_ge_i32 s28, s24")
        a(f"s_cbranch_scc1 L_c_{tag}")
        lds_wait_ge(f"v{CT}", O_LANDED, "s24", f"v{T0}", "s28", "s27")
        a.label(f"L_c_{tag}")
    def c_kreads(KD=KD):
        for u in range(2):
            for r in range(4):
                d = KD + (u*4+r)*4
                a(f"ds_read_b128 v[{d}:{d+3}], v{KC+r} offset:{u*4096}")
    def c_qk(waits, KD=KD):
        for u in range(2):
            for r in range(4):
                d = KD + (u*4+r)*4
                if waits: a(f"s_waitcnt lgkmcnt({7-(u*4+r)})")
                c = "0" if r == 0 else f"v[{S+4*u}:{S+4*u+3}]"
                a(f"v_mfma_f32_16x16x32_bf16 v[{S+4*u}:{S+4*u+3}], v[{d}:{d+3}], v[{Q+4*r}:{Q+4*r+3}], {c}")
    def c_softmax():
        a(f"v_max3_f32 v{T0}, v{S}, v{S+1}, v{S+2}")
        a(f"v_max3_f32 v{T1}, v{S+3}, v{S+4}, v{S+5}")
        a(f"v_max3_f32 v{T0}, v{T0}, v{S+6}, v{S+7}")
        a(f"v_max_f32 v{T0}, v{T0}, v{T1}")
        a(f"v_mul_f32 v{T0}, s21, v{T0}")
        a(f"v_max_f32 v{T0}, v{T0}, v{MS}")
        a(f"v_max_f32_dpp v{T0}, v{T0}, v{T0} row_bcast:15 row_mask:0xa bank_mask:0xf")
        a(f"v_max_f32_dpp v{T0}, v{T0}, v{T0} row_bcast:31 row_mask:0xc bank_mask:0xf")
        a(f"v_readlane_b32 s29, v{T0}, 63")
        a(f"v_subrev_f32 v{AL}, s29, v{MS}")
        a(f"v_mov_b32 v{MS}, s29")
        a(f"v_exp_f32 v{AL}, v{AL}")
        for k in range(8): a(f"v_fma_f32 v{S+k}, v{S+k}, s21, -v{MS}")
        for k in range(8): a(f"v_exp_f32 v{S+k}, v{S+k}")
        a(f"v_mul_f32 v{LS}, v{LS}, v{AL}")
        for r in range(4): a(f"v_mul_f32 v{O+r}, v{O+r}, v{AL}")
        for k in range(8):
            a(f"v_cvt_pk_bf16_f32 v{T1}, v{S+k}, v{S+k}")
            a(f"v_add_f32 v{LS}, v{LS}, v{S+k}")
            for r in range(4): a(f"v_and_b32 v{AO+4*k+r}, v{T1}, v{MK+r}")
    def c_vreads(VD=VD):
        for k in range(8):
            u, r = k >> 2, k & 3
            d = VD + 4*k
            a(f"ds_read_b128 v[{d}:{d+3}], v{VC} offset:{8192 + u*4096 + r*256}")
    def c_advance():
        a("s_add_u32 s22, s22, %d" % NCONS)
        a(f"v_mov_b32 v{T0}, s22")
        a("s_lshl_b32 s30, s20, 2")
        a(f"v_add_u32 v{T1}, s30, v{CT}")
        a(f"s_add_u32 s23, s23, {NCONS*SLOT}")
        a(f"s_sub_u32 s30, s23, {NSLOT*SLOT}")
        a(f"s_cmp_ge_u32 s23, {NSLOT*SLOT}")
        a("s_cselect_b32 s23, s30, s23")
    def c_free():
        a(f"ds_write_b32 v{T1}, v{T0} offset:{O_NEXT}")
    def c_pv(waits, VD=VD):
        for k in range(8):
            d = VD + 4*k
            if waits:
                a(f"s_waitcnt lgkmcnt({7-k})")
                if k == 7: c_free()
            a(f"v_mfma_f32_16x16x32_bf16 v[{O}:{O+3}], v[{AO+4*k}:{AO+4*k+3}], v[{d}:{d+3}], v[{O}:{O+3}]")
    def c_checkpoint(tag):
        assert period == 12
        a(f"s_sub_u32 s30, s22, {NCONS}")
        a("s_cmp_lg_u32 s30, s31")
        a(f"s_cbranch_scc1 L_c_nocp{tag}")
        a(f"s_add_u32 s31, s31, {period}")
        a(f"v_mov_b32 v{T0}, 1"); a(f"v_mov_b32 v{T1}, {O_G}")
        a("s_mov_b64 exec, 1")
        a(f"buffer_atomic_add v{T0}, v{T1}, s[32:35], 0 offen sc0")
        a("s_waitcnt vmcnt(0)")
        a("s_mov_b64 exec, -1")
        a(f"v_readfirstlane_b32 s36, v{T0}")
        a("s_add_u32 s37, s30, 1")
        a("s_lshl_b32 s37, s37, 8")
        a(f"s_mul_i32 s36, s36, {period}")
        a("s_sub_i32 s36, s36, s37")
        a("s_mov_b32 s37, 0")
        for k, t in enumerate(th):
            a(f"s_cmp_gt_i32 s36, {t}" if t > 0 else f"s_cmp_lt_i32 s36, {t}")
            a(f"s_cselect_b32 s37, {k+1}, s37")
        a(f"v_mov_b32 v{T0}, s37")
        a(f"ds_write_b32 v{CT}, v{T0} offset:{O_NEXT + 12}")
        if stamps:
            a("s_lshr_b32 s90, s31, 2"); a("s_and_b32 s90, s90, 0xfc"); a("s_sub_u32 s90, s31, 12")
            a("s_mul_i32 s90, s90, 171"); a("s_lshr_b32 s90, s90, 11"); a("s_add_u32 s90, s90, 40"); a("s_lshl_b32 s90, s90, 2")
            a("v_mov_b32 v252, s36"); a("v_mov_b32 v253, s90"); a("s_mov_b64 exec, 1")
            a("buffer_store_dword v252, v253, s[92:95], 0 offen"); a("s_mov_b64 exec, -1")
        a.label(f"L_c_nocp{tag}")
    def c_ml():
        a(f"v_add_f32_dpp v{LS}, v{LS}, v{LS} row_bcast:15 row_mask:0xa bank_mask:0xf")
        a(f"v_add_f32_dpp v{LS}, v{LS}, v{LS} row_bcast:31 row_mask:0xc bank_mask:0xf")
        a(f"v_readlane_b32 s29, v{LS}, 63")
        a("s_lshl_b32 s30, s20, 10")
        a("v_lshrrev_b32 v1, 4, v0"); a("v_and_b32 v2, 15, v0")
        a("v_lshlrev_b32 v1, 4, v1"); a("v_lshl_add_u32 v1, v2, 5, v1")
        a(f"v_add_u32 v1, s30, v1"); a(f"v_add_u32 v1, v1, v{CT}")
        a(f"v_add_u32 v2, s30, v{CT}")
        a(f"v_mov_b32 v{MS+1}, s29")
        a(f"v_mov_b32 v3, 1")
        a("s_mov_b64 exec, 1")
        a(f"ds_write_b64 v2, v[{MS}:{MS+1}] offset:{O_APART + 512}")
        a("s_waitcnt lgkmcnt(0)")
        a(f"ds_add_u32 v{CT}, v3 offset:{O_MLCNT}")
        a("s_mov_b64 exec, -1")
    PK = [(KD, VD), (160, 192)][:int(preload)]
    for n, (kd, vd) in enumerate(PK):
        c_addr()
        a("s_add_u32 s24, s24, 4")
        c_wait(f"first{n}")
        c_kreads(kd)
        a("s_waitcnt lgkmcnt(0)")
        c_vreads(vd)
        c_advance()
        a("s_waitcnt lgkmcnt(0)")
        c_free()
    lds_wait_ge(f"v{CT}", O_QRDY, "1", f"v{T0}", "s26", "s27")
    stamp(9)
    for r in range(4):
        a(f"ds_read_b128 v[{Q+4*r}:{Q+4*r+3}], v4 offset:{O_QBF + 64*r}")
    if PK: a("s_waitcnt lgkmcnt(0)")
    for n, (kd, vd) in enumerate(PK):
        c_qk(False, kd)
        c_softmax()
        c_pv(False, vd)
        assert not adapt or len(PK) == 1
        if adapt: c_checkpoint("b")
    a.label("L_c_loop")
    c_addr()
    a("s_add_u32 s24, s24, 2")
    if klast:
        a(f"s_cmp_eq_u32 s22, {NT-1}"); a("s_cselect_b32 s30, 2, 0"); a("s_sub_u32 s24, s24, s30")
    c_wait("kok")
    c_kreads()
    c_qk(True)
    a("s_lshl_b32 s24, s22, 2"); a("s_add_u32 s24, s24, 4")
    if klast:
        a(f"s_cmp_eq_u32 s22, {NT-2}"); a("s_cselect_b32 s30, 2, 0"); a("s_add_u32 s24, s24, s30")
    c_softmax()
    if earlyml:
        a(f"s_add_u32 s30, s22, {NCONS}")
        a(f"s_cmp_lt_u32 s30, {NT}")
        a("s_cbranch_scc1 L_c_notlast")
        c_ml()
        a.label("L_c_notlast")
    c_wait("vok")
    c_vreads()
    c_advance()
    c_pv(True)
    if adapt: c_checkpoint("a")
    a(f"s_cmp_lt_u32 s22, {NT}")
    a("s_cbranch_scc1 L_c_loop")
    if not earlyml: c_ml()
    a("s_mov_b32 exec_hi, 0")
    a(f"ds_write_b128 v1, v[{O}:{O+3}] offset:{O_APART}")
    a("s_mov_b64 exec, -1")
    stamp(2)
    a("s_branch L_join")

    a.label("L_side")
    a.c("==== side waves: q projection, gate, FFN, output projection")
    MKs = 4; A0 = 8; A1 = 52; Y = 12; X = 32; QA = 56; W = 64
    VAD = 60; VO = 62; VT0, VT1, VT2, VT3 = 224, 225, 226, 227; CTs = 228; VG = 229; VG1 = 230
    a("s_sub_u32 s20, s19, 4")
    a("s_mov_b32 s70, 256"); a("s_mov_b32 s71, 0x20000")
    a("s_load_dwordx2 s[44:45], s[0:1], 0")
    a("s_load_dwordx4 s[24:27], s[0:1], 24")
    a("s_load_dwordx4 s[28:31], s[0:1], 48")
    a("s_load_dwordx4 s[32:35], s[0:1], 64")
    a(f"v_mov_b32 v{CTs}, {CTL}")
    a("v_lshrrev_b32 v1, 4, v0")
    a("v_and_b32 v2, 15, v0")
    a("s_cmp_lg_u32 s20, 0")
    a("s_cbranch_scc1 L_s_noinit")
    a("v_mov_b32 v8, 0"); a("v_mov_b32 v9, 0"); a("v_mov_b32 v10, 0"); a("v_mov_b32 v11, 0")
    a(f"ds_write_b128 v{CTs}, v[8:11] offset:0")
    a(f"ds_write_b128 v{CTs}, v[8:11] offset:32")
    a(f"ds_write_b128 v{CTs}, v[8:11] offset:48")
    a("v_mov_b32 v9, 1"); a("v_mov_b32 v10, 2"); a("v_mov_b32 v11, 0")
    a(f"ds_write_b128 v{CTs}, v[8:11] offset:{O_NEXT}")
    a.label("L_s_noinit")
    a("v_lshlrev_b32 v3, 3, v1")
    a(f"v_lshlrev_b32 v{VT0}, 15, v1")
    a(f"v_lshl_add_u32 v{VT0}, v2, 4, v{VT0}")
    if rot: a("s_lshl_b32 s46, s17, 2"); a("s_add_u32 s46, s46, s20")
    else: a("s_mov_b32 s46, s20")
    for st in range(10):
        a(f"s_add_u32 s21, s46, {4*st}")
        a("s_sub_u32 s22, s21, 40")
        a("s_cmp_ge_u32 s21, 40")
        a(f"s_cselect_b32 s{50+st}, s22, s21")
    a("s_waitcnt lgkmcnt(0)")
    a("s_mul_i32 s21, s17, 1280")
    a("s_add_u32 s4, s44, s21"); a("s_addc_u32 s5, s45, 0"); a("s_mov_b32 s6, 1280"); a("s_mov_b32 s7, 0x20000")
    a("s_lshl_b32 s21, s16, 8")
    a("s_add_u32 s8, s24, s21"); a("s_addc_u32 s9, s25, 0")
    a(f"s_sub_u32 s10, {640*8192}, s21"); a("s_mov_b32 s11, 0x20000")
    for k in range(10):
        a(f"s_lshl_b32 s21, s{50+k}, 5")
        a(f"buffer_load_dwordx2 v[{X+2*k}:{X+2*k+1}], v3, s[4:7], s21 offen")
    def wq_issue(n):
        k, r = n >> 2, n & 3
        a(f"s_lshl_b32 s21, s{50+k}, 17")
        if r: a(f"s_add_u32 s21, s21, {r*8192}")
        a(f"buffer_load_dwordx4 v[{W+4*n}:{W+4*n+3}], v{VT0}, s[8:11], s21 offen {wflags}")
    for n in range(swq): wq_issue(n)
    stamp(6)
    a("s_barrier")
    masks(MKs, "v0", f"v{VT1}", f"v{VT2}")
    a("s_mov_b32 s36, 0x01000100"); a("s_mov_b32 s37, 0x03020302")
    ns = 1 if stamps else 0
    a(f"s_waitcnt vmcnt({swq + ns})")
    stamp(7)
    def gemv_steps(nblk, acc, first_zero, waitfn, postfn=None):
        for k in range(nblk):
            for r in range(4):
                n = 4*k + r
                A = A0 if n % 2 == 0 else A1
                xs = X + 2*k + (r >> 1)
                a(f"v_perm_b32 v{VT1}, v{xs}, v{xs}, s{36 + (r & 1)}")
                for q in range(4): a(f"v_and_b32 v{A+q}, v{VT1}, v{MKs+q}")
                waitfn(n)
                c = "0" if (n == 0 and first_zero) else f"v[{acc}:{acc+3}]"
                a(f"v_mfma_f32_16x16x32_bf16 v[{acc}:{acc+3}], v[{A}:{A+3}], v[{W+4*n}:{W+4*n+3}], {c}")
    def window(issue, total, win):
        def f(n):
            a(f"s_waitcnt vmcnt({min(win, total - n) - 1})")
            if n + win < total: issue(n + win)
        return f
    gemv_steps(10, QA, True, window(wq_issue, 40, swq))
    stamp(8)
    a("v_lshlrev_b32 v3, 4, v1"); a("v_lshl_add_u32 v3, v2, 5, v3")
    a("s_lshl_b32 s21, s20, 9")
    a(f"v_add3_u32 v{VT2}, v3, s21, v{CTs}")
    a("s_mov_b32 exec_hi, 0")
    a(f"ds_write_b128 v{VT2}, v[{QA}:{QA+3}] offset:{O_QPART}")
    a("s_mov_b64 exec, -1")
    a(f"v_mov_b32 v{VT1}, 1")
    a("s_waitcnt lgkmcnt(0)")
    a("s_mov_b64 exec, 1")
    a(f"ds_add_rtn_u32 v{VT1}, v{CTs}, v{VT1} offset:{O_QCNT}")
    a("s_mov_b64 exec, -1")
    a("s_waitcnt lgkmcnt(0)")
    a(f"v_readfirstlane_b32 s21, v{VT1}")
    a("s_cmp_lg_u32 s21, 3")
    a("s_cbranch_scc1 L_s_qdone")
    a(f"v_lshl_add_u32 v{VT2}, v0, 3, v{CTs}")
    for c in range(4):
        a(f"ds_read_b64 v[{W+2*c}:{W+2*c+1}], v{VT2} offset:{O_QPART + 512*c}")
    a("s_waitcnt lgkmcnt(0)")
    a(f"v_add_f32 v{W}, v{W}, v{W+2}"); a(f"v_add_f32 v{W+1}, v{W+1}, v{W+3}")
    a(f"v_add_f32 v{W+4}, v{W+4}, v{W+6}"); a(f"v_add_f32 v{W+5}, v{W+5}, v{W+7}")
    a(f"v_add_f32 v{W}, v{W}, v{W+4}"); a(f"v_add_f32 v{W+1}, v{W+1}, v{W+5}")
    a(f"v_cvt_pk_bf16_f32 v{W}, v{W}, v{W+1}")
    a(f"v_lshl_add_u32 v{VT2}, v0, 2, v{CTs}")
    a(f"ds_write_b32 v{VT2}, v{W} offset:{O_QBF}")
    a(f"v_mov_b32 v{VT1}, 1")
    a("s_waitcnt lgkmcnt(0)")
    a(f"ds_write_b32 v{CTs}, v{VT1} offset:{O_QRDY}")
    a.label("L_s_qdone")
    stamp(3)
    a("s_cmp_lg_u32 s20, 0")
    a("s_cbranch_scc1 L_s_nosent")
    a("s_load_dwordx2 s[64:65], s[0:1], 96")
    a("s_load_dwordx2 s[68:69], s[0:1], 88")
    a("v_lshlrev_b32 v3, 4, v0")
    for e in range(4): a(f"v_mov_b32 v{W+e}, -1")
    a(f"s_mul_i32 s21, s18, {YSTRIDE}")
    a("s_mov_b32 s66, 1280"); a("s_mov_b32 s67, 0x20000")
    a("s_waitcnt lgkmcnt(0)")
    a("s_add_u32 s64, s64, s21"); a("s_addc_u32 s65, s65, 0")
    for q in range(2):
        if not nosent: a(f"buffer_store_dwordx4 v[{W}:{W+3}], v3, s[64:67], 0 offen offset:{1024*q} {sentflags}")
    a("s_waitcnt vmcnt(0)")
    a.label("L_s_nosent")
    a("s_mov_b32 s8, s34"); a("s_mov_b32 s9, s35"); a("s_mov_b32 s10, 1280"); a("s_mov_b32 s11, 0x20000")
    a("v_lshlrev_b32 v3, 4, v0")
    a(f"buffer_load_dwordx4 v[{W}:{W+3}], v3, s[4:7], 0 offen")
    a(f"buffer_load_dwordx4 v[{W+4}:{W+7}], v3, s[4:7], 0 offen offset:1024")
    a(f"buffer_load_dwordx4 v[{W+8}:{W+11}], v3, s[8:11], 0 offen")
    a(f"buffer_load_dwordx4 v[{W+12}:{W+15}], v3, s[8:11], 0 offen offset:1024")
    a(f"v_mov_b32 v{VG}, 0")
    a("s_waitcnt vmcnt(0)")
    for k in range(8):
        xs, wsr = W + k, W + 8 + k
        a(f"v_lshlrev_b32 v{VT0}, 16, v{xs}"); a(f"v_lshlrev_b32 v{VT1}, 16, v{wsr}")
        a(f"v_and_b32 v{VT2}, 0xffff0000, v{xs}"); a(f"v_and_b32 v{VT3}, 0xffff0000, v{wsr}")
        a(f"v_mul_f32 v{VT0}, v{VT0}, v{VT1}"); a(f"v_mul_f32 v{VT2}, v{VT2}, v{VT3}")
        a(f"v_cvt_pk_bf16_f32 v{VT0}, v{VT0}, v{VT2}")
        a(f"v_lshlrev_b32 v{VT1}, 16, v{VT0}"); a(f"v_and_b32 v{VT2}, 0xffff0000, v{VT0}")
        a(f"v_add_f32 v{VG}, v{VG}, v{VT1}"); a(f"v_add_f32 v{VG}, v{VG}, v{VT2}")
    for sh in (1, 2, 4, 8):
        a(f"v_add_f32_dpp v{VG}, v{VG}, v{VG} row_ror:{sh} row_mask:0xf bank_mask:0xf")
    a(f"v_add_f32_dpp v{VG}, v{VG}, v{VG} row_bcast:15 row_mask:0xa bank_mask:0xf")
    a(f"v_add_f32_dpp v{VG}, v{VG}, v{VG} row_bcast:31 row_mask:0xc bank_mask:0xf")
    a(f"v_readlane_b32 s21, v{VG}, 63")
    a(f"v_mov_b32 v{VG}, s21")
    a(f"v_cvt_pk_bf16_f32 v{VG}, v{VG}, v{VG}")
    a(f"v_and_b32 v{VG}, 0xffff0000, v{VG}")
    a(f"v_mul_f32 v{VG}, {f2u(-LOG2E):#x}, v{VG}")
    a(f"v_exp_f32 v{VG}, v{VG}")
    a(f"v_add_f32 v{VG}, 1.0, v{VG}")
    a(f"v_rcp_f32 v{VG}, v{VG}")
    a(f"v_cvt_pk_bf16_f32 v{VG}, v{VG}, v{VG}")
    a(f"v_and_b32 v{VG}, 0xffff0000, v{VG}")
    a(f"v_sub_f32 v{VG1}, 1.0, v{VG}")
    a(f"v_cvt_pk_bf16_f32 v{VG1}, v{VG1}, v{VG1}")
    a(f"v_and_b32 v{VG1}, 0xffff0000, v{VG1}")
    for r in range(20): a(f"v_mov_b32 v{Y+r}, 0")
    a("s_cmp_ge_u32 s16, 27")
    a("s_cbranch_scc1 L_s_noffn")
    if rot and not rotf:
        a("v_lshrrev_b32 v3, 4, v0"); a("v_lshlrev_b32 v3, 3, v3")
        for k in range(10):
            a(f"s_add_u32 s{50+k}, s20, {4*k}")
            a(f"s_lshl_b32 s21, s{50+k}, 5")
            a(f"buffer_load_dwordx2 v[{X+2*k}:{X+2*k+1}], v3, s[4:7], s21 offen")
        a("s_waitcnt vmcnt(0)")
    a("v_cmp_gt_u32 vcc, 8, v2")
    a(f"v_mov_b32 v{VT0}, s30"); a(f"v_mov_b32 v{VT1}, s28")
    a(f"v_cndmask_b32 v{VAD}, v{VT0}, v{VT1}, vcc")
    a(f"v_mov_b32 v{VT0}, s31"); a(f"v_mov_b32 v{VT1}, s29")
    a(f"v_cndmask_b32 v{VAD+1}, v{VT0}, v{VT1}, vcc")
    a(f"s_movk_i32 s21, {4*3456}")
    a(f"v_mul_lo_u32 v{VT0}, v1, s21")
    a(f"v_and_b32 v{VT1}, 7, v2")
    a(f"v_lshl_add_u32 v{VT0}, v{VT1}, 4, v{VT0}")
    a("s_lshl_b32 s21, s16, 7")
    a(f"v_add_u32 v{VT0}, s21, v{VT0}")
    a(f"v_mov_b32 v{VT1}, 0")
    VB = 250
    a(f"v_lshl_add_u64 v[{VB}:{VB+1}], v[{VT0}:{VT1}], 0, v[{VAD}:{VAD+1}]")
    a("s_mov_b32 s38, 6912"); a("s_mov_b32 s39, 0"); a("s_mov_b32 s41, 0")
    def gu_issue(n):
        k, r = n >> 2, n & 3
        if r == 0:
            a(f"s_mul_i32 s40, s{50+k}, {16*3456}")
            a(f"v_lshl_add_u64 v[{VAD}:{VAD+1}], v[{VB}:{VB+1}], 0, s[40:41]")
        a(f"global_load_dwordx4 v[{W+4*n}:{W+4*n+3}], v[{VAD}:{VAD+1}], off offset:{(r&1)*3456} {wflags}")
        if r == 1: a(f"v_lshl_add_u64 v[{VAD}:{VAD+1}], v[{VAD}:{VAD+1}], 0, s[38:39]")
    for n in range(swf): gu_issue(n)
    gemv_steps(10, QA, True, window(gu_issue, 40, swf))
    a("v_lshlrev_b32 v3, 4, v1"); a("v_lshl_add_u32 v3, v2, 5, v3")
    a("s_lshl_b32 s21, s20, 9")
    a(f"v_add3_u32 v{VT2}, v3, s21, v{CTs}")
    a("s_mov_b32 exec_hi, 0")
    a(f"ds_write_b128 v{VT2}, v[{QA}:{QA+3}] offset:{O_GUPART}")
    a("s_mov_b64 exec, -1")
    a(f"v_mov_b32 v{VT1}, 1")
    a("s_waitcnt lgkmcnt(0)")
    a("s_mov_b64 exec, 1")
    a(f"ds_add_u32 v{CTs}, v{VT1} offset:{O_GUCNT}")
    a("s_mov_b64 exec, -1")
    a("s_mov_b32 s8, s32"); a("s_mov_b32 s9, s33"); a(f"s_mov_b32 s10, {1728*1280}"); a("s_mov_b32 s11, 0x20000")
    a("s_lshl_b32 s21, s20, 4")
    a(f"v_lshl_add_u32 v{VT0}, v1, 2, s21")
    a("s_movk_i32 s21, 1280")
    a(f"v_mul_lo_u32 v{VO}, v{VT0}, s21")
    a(f"v_lshl_add_u32 v{VO}, v2, 4, v{VO}")
    a(f"s_mul_i32 s22, s16, {64*1280}")
    def wd_issue(n):
        r, cb = n // 5, n % 5
        a(f"s_add_u32 s21, s22, {r*1280}")
        a(f"buffer_load_dwordx4 v[{W+4*n}:{W+4*n+3}], v{VO}, s[8:11], s21 offen offset:{cb*256} {wflags}")
    for n in range(20):
        if n >= swf: a(f"s_waitcnt vmcnt({swf-1})")
        wd_issue(n)
    lds_wait_ge(f"v{CTs}", O_GUCNT, "4", f"v{VT1}", "s43", "s42")
    a(f"v_lshl_add_u32 v{VT0}, v{VT0}, 2, v{CTs}")
    G0 = 160
    for c in range(4):
        a(f"ds_read_b128 v[{G0+8*c}:{G0+8*c+3}], v{VT0} offset:{O_GUPART + 512*c}")
        a(f"ds_read_b128 v[{G0+8*c+4}:{G0+8*c+7}], v{VT0} offset:{O_GUPART + 512*c + 256}")
    a("s_waitcnt lgkmcnt(0)")
    for e in range(8):
        a(f"v_add_f32 v{G0+e}, v{G0+e}, v{G0+8+e}")
        a(f"v_add_f32 v{G0+16+e}, v{G0+16+e}, v{G0+24+e}")
    for e in range(8): a(f"v_add_f32 v{G0+e}, v{G0+e}, v{G0+16+e}")
    for r in range(4):
        gt, up = G0 + r, G0 + 4 + r
        a(f"v_cvt_pk_bf16_f32 v{VT1}, v{gt}, v{up}")
        a(f"v_lshlrev_b32 v{gt}, 16, v{VT1}")
        a(f"v_and_b32 v{up}, 0xffff0000, v{VT1}")
        a(f"v_max_f32 v{gt}, 0, v{gt}")
        a(f"v_mul_f32 v{gt}, v{gt}, v{up}")
        a(f"v_cvt_pk_bf16_f32 v{gt}, v{gt}, v{gt}")
        a(f"v_and_b32 v{gt}, 0xffff0000, v{gt}")
        a(f"v_mul_f32 v{gt}, v{gt}, v{VG1}")
    for r in range(4):
        A = A0 if r % 2 == 0 else A1
        a(f"v_cvt_pk_bf16_f32 v{VT1}, v{G0+r}, v{G0+r}")
        for q in range(4): a(f"v_and_b32 v{A+q}, v{VT1}, v{MKs+q}")
        for cb in range(5):
            n = 5*r + cb
            if n == 0: a("s_waitcnt vmcnt(0)")
            a(f"v_mfma_f32_16x16x32_bf16 v[{Y+4*cb}:{Y+4*cb+3}], v[{A}:{A+3}], v[{W+4*n}:{W+4*n+3}], v[{Y+4*cb}:{Y+4*cb+3}]")
    a.label("L_s_noffn")
    a("s_mov_b32 s8, s26"); a("s_mov_b32 s9, s27"); a(f"s_mov_b32 s10, {4096*1280}"); a("s_mov_b32 s11, 0x20000")
    a("s_lshl_b32 s21, s20, 5")
    a(f"v_lshl_add_u32 v{VT0}, v1, 2, s21")
    a("s_movk_i32 s21, 1280")
    a(f"v_mul_lo_u32 v{VO}, v{VT0}, s21")
    a(f"v_lshl_add_u32 v{VO}, v2, 4, v{VO}")
    a(f"s_mul_i32 s22, s16, {128*1280}")
    for n in range(40):
        k, r, cb = n // 20, (n // 5) % 4, n % 5
        if n >= swf: a(f"s_waitcnt vmcnt({swf-1})")
        a(f"s_add_u32 s21, s22, {(16*k + r)*1280}")
        a(f"buffer_load_dwordx4 v[{W+4*n}:{W+4*n+3}], v{VO}, s[8:11], s21 offen offset:{cb*256} {wflags}")
    a("s_waitcnt vmcnt(0)")
    stamp(4)
    a("s_cmp_lg_u32 s20, 0")
    a("s_cbranch_scc1 L_s_noarr")
    if static_red is None:
        lds_wait_ge(f"v{CTs}", O_LANDED, str(arr - 10), f"v{VT1}", "s43", "s42", sleep=32)
        lds_wait_ge(f"v{CTs}", O_LANDED, str(arr), f"v{VT1}", "s43", "s42", sleep=2)
        a(f"s_lshl_b32 s21, s17, {cntshift}")
        a(f"v_mov_b32 v{VT2}, s21"); a(f"v_mov_b32 v{VT1}, 1")
        a("s_mov_b64 exec, 1")
        a(f"buffer_atomic_add v{VT1}, v{VT2}, s[68:71], 0 offen sc0")
        a("s_waitcnt vmcnt(0)")
        a(f"ds_write_b32 v{CTs}, v{VT1} offset:{O_LAST}")
        a("s_mov_b64 exec, -1")
    else:
        a(f"s_cmp_eq_u32 s16, {static_red}")
        a("s_cselect_b32 s21, 31, 0")
        a(f"v_mov_b32 v{VT1}, s21")
        a(f"ds_write_b32 v{CTs}, v{VT1} offset:{O_LAST}")
    a("s_waitcnt lgkmcnt(0)")
    a.label("L_s_noarr")
    a("s_load_dwordx2 s[12:13], s[0:1], 80")
    a("s_load_dwordx2 s[76:77], s[0:1], 96")
    a(f"v_lshl_add_u32 v{VT0}, v{VT0}, 2, v{CTs}")
    M0r = 232
    OP = 32
    def scales():
        for c in range(3):
            a(f"ds_read_b64 v[{M0r+2*c}:{M0r+2*c+1}], v{CTs} offset:{O_APART + 1024*c + 512}")
        a("s_waitcnt lgkmcnt(0)")
        a(f"v_max3_f32 v{VT1}, v{M0r}, v{M0r+2}, v{M0r+4}")
        for c in range(3): a(f"v_sub_f32 v{M0r+2*c}, v{M0r+2*c}, v{VT1}")
        for c in range(3): a(f"v_exp_f32 v{M0r+2*c}, v{M0r+2*c}")
        a(f"v_mul_f32 v{VT1}, v{M0r}, v{M0r+1}")
        a(f"v_fma_f32 v{VT1}, v{M0r+2}, v{M0r+3}, v{VT1}")
        a(f"v_fma_f32 v{VT1}, v{M0r+4}, v{M0r+5}, v{VT1}")
        a(f"v_rcp_f32 v{VT1}, v{VT1}")
        a(f"v_mul_f32 v{VT1}, v{VT1}, v{VG}")
        for c in range(3): a(f"v_mul_f32 v{M0r+2*c}, v{M0r+2*c}, v{VT1}")
    a("s_waitcnt lgkmcnt(0)")
    a("s_mul_i32 s21, s17, 1280")
    a("s_add_u32 s12, s12, s21"); a("s_addc_u32 s13, s13, 0"); a("s_mov_b32 s14, 1280"); a("s_mov_b32 s15, 0x20000")
    a(f"s_mul_i32 s21, s18, {YSTRIDE}")
    a("s_add_u32 s76, s76, s21"); a("s_addc_u32 s77, s77, 0"); a("s_mov_b32 s78, 1280"); a("s_mov_b32 s79, 0x20000")
    if earlyml:
        lds_wait_ge(f"v{CTs}", O_LANDED, "498", f"v{VT1}", "s43", "s42", sleep=32)
        lds_wait_ge(f"v{CTs}", O_MLCNT, "3", f"v{VT1}", "s43", "s42", sleep=2)
        scales()
    a("s_barrier")
    stamp(10)
    for c in range(3):
        for k in range(2):
            d = OP + (c*2 + k)*4
            a(f"ds_read_b128 v[{d}:{d+3}], v{VT0} offset:{O_APART + 1024*c + 64*k}")
    if not earlyml: scales()
    a("s_waitcnt lgkmcnt(0)")
    OV = 240
    for k in range(2):
        for r in range(4):
            e = OV + 4*k + r
            a(f"v_mul_f32 v{e}, v{OP + k*4 + r}, v{M0r}")
            a(f"v_fma_f32 v{e}, v{OP + (2+k)*4 + r}, v{M0r+2}, v{e}")
            a(f"v_fma_f32 v{e}, v{OP + (4+k)*4 + r}, v{M0r+4}, v{e}")
    AA = [32, 36, 40, 44]
    for k in range(2):
        for r in range(4):
            n0 = 4*k + r
            A = AA[n0 % 4]
            a(f"v_cvt_pk_bf16_f32 v{VT1}, v{OV+n0}, v{OV+n0}")
            for q in range(4): a(f"v_and_b32 v{A+q}, v{VT1}, v{MKs+q}")
            for cb in range(5):
                n = n0*5 + cb
                a(f"v_mfma_f32_16x16x32_bf16 v[{Y+4*cb}:{Y+4*cb+3}], v[{A}:{A+3}], v[{W+4*n}:{W+4*n+3}], v[{Y+4*cb}:{Y+4*cb+3}]")
    a("v_lshlrev_b32 v3, 4, v1"); a("v_lshl_add_u32 v3, v2, 5, v3")
    a("s_mul_i32 s21, s20, 2560")
    a(f"v_add_u32 v{VT2}, s21, v3")
    a("s_mov_b32 exec_hi, 0")
    for cb in range(5):
        a(f"ds_write_b128 v{VT2}, v[{Y+4*cb}:{Y+4*cb+3}] offset:{YPART + 512*cb}")
    a("s_mov_b64 exec, -1")
    a("s_waitcnt lgkmcnt(0)")
    stamp(11)
    a("s_barrier")
    stamp(13)
    a("s_cmp_ge_u32 s20, 3")
    a("s_cbranch_scc1 L_end")
    a(f"ds_read_b32 v{VT1}, v{CTs} offset:{O_LAST}")
    a("s_lshl_b32 s21, s20, 10")
    a(f"v_lshl_add_u32 v{VT2}, v0, 4, s21")
    R0 = 64
    for c in range(4):
        a(f"ds_read_b128 v[{R0+4*c}:{R0+4*c+3}], v{VT2} offset:{YPART + 2560*c}")
    a("s_waitcnt lgkmcnt(4)")
    a(f"v_readfirstlane_b32 s22, v{VT1}")
    a("s_cmp_lg_u32 s22, 31")
    a("s_cbranch_scc1 L_pub")
    for c in range(4, 8):
        a(f"ds_read_b128 v[{R0+4*c}:{R0+4*c+3}], v{VT2} offset:{YPART + 2560*c}")
    a(f"v_lshrrev_b32 v{VT2}, 1, v{VT2}")
    a("s_waitcnt lgkmcnt(0)")
    for (x, y) in ((0, 1), (2, 3), (4, 5), (6, 7), (0, 2), (4, 6)):
        a(f"v_pk_add_f32 v[{R0+4*x}:{R0+4*x+1}], v[{R0+4*x}:{R0+4*x+1}], v[{R0+4*y}:{R0+4*y+1}]")
        a(f"v_pk_add_f32 v[{R0+4*x+2}:{R0+4*x+3}], v[{R0+4*x+2}:{R0+4*x+3}], v[{R0+4*y+2}:{R0+4*y+3}]")
    a(f"v_cvt_pk_bf16_f32 v{R0}, v{R0}, v{R0+1}")
    a(f"v_cvt_pk_bf16_f32 v{R0+2}, v{R0+2}, v{R0+3}")
    a(f"v_and_b32 v{R0+1}, 0xffff0000, v{R0}"); a(f"v_lshlrev_b32 v{R0}, 16, v{R0}")
    a(f"v_and_b32 v{R0+3}, 0xffff0000, v{R0+2}"); a(f"v_lshlrev_b32 v{R0+2}, 16, v{R0+2}")
    a(f"v_pk_add_f32 v[{R0}:{R0+1}], v[{R0}:{R0+1}], v[{R0+16}:{R0+17}]")
    a(f"v_pk_add_f32 v[{R0+2}:{R0+3}], v[{R0+2}:{R0+3}], v[{R0+18}:{R0+19}]")
    if perturb:
        for e in range(4): a(f"v_mul_f32 v{R0+e}, {f2u(1.0 + perturb):#x}, v{R0+e}")
    a(f"v_cvt_pk_bf16_f32 v{R0}, v{R0}, v{R0+1}")
    a(f"v_cvt_pk_bf16_f32 v{R0+1}, v{R0+2}, v{R0+3}")
    a(f"buffer_store_dwordx2 v[{R0}:{R0+1}], v{VT2}, s[12:15], 0 offen {outflags}")
    stamp(5)
    a("s_endpgm")
    a.label("L_pub")
    a(f"v_lshrrev_b32 v{VT2}, 1, v{VT2}")
    a("s_waitcnt lgkmcnt(0)")
    for (x, y) in ((0, 1), (2, 3), (0, 2)):
        a(f"v_pk_add_f32 v[{R0+4*x}:{R0+4*x+1}], v[{R0+4*x}:{R0+4*x+1}], v[{R0+4*y}:{R0+4*y+1}]")
        a(f"v_pk_add_f32 v[{R0+4*x+2}:{R0+4*x+3}], v[{R0+4*x+2}:{R0+4*x+3}], v[{R0+4*y+2}:{R0+4*y+3}]")
    a(f"v_cvt_pk_bf16_f32 v{R0}, v{R0}, v{R0+1}")
    a(f"v_cvt_pk_bf16_f32 v{R0+1}, v{R0+2}, v{R0+3}")
    for e in range(2): a(f"v_min_u32 v{R0+e}, -2, v{R0+e}")
    a(f"buffer_store_dwordx2 v[{R0}:{R0+1}], v{VT2}, s[76:79], 0 offen sc1")
    stamp(5)
    a("s_endpgm")

    a.label("L_join")
    a("s_load_dwordx2 s[40:41], s[0:1], 96")
    a(f"v_mov_b32 v1, {CTL}")
    a("s_waitcnt lgkmcnt(0)")
    a("s_barrier")
    a(f"ds_read_b32 v2, v1 offset:{O_LAST}")
    a(f"s_mul_i32 s21, s17, {32*YSTRIDE}")
    a("s_add_u32 s40, s40, s21"); a("s_addc_u32 s41, s41, 0"); a(f"s_mov_b32 s42, {32*YSTRIDE}"); a("s_mov_b32 s43, 0x20000")
    a("s_waitcnt lgkmcnt(0)")
    a("v_readfirstlane_b32 s21, v2")
    a("s_cmp_lg_u32 s21, 31")
    a("s_cbranch_scc1 L_join3")
    a("v_lshrrev_b32 v1, 4, v0"); a("v_and_b32 v2, 15, v0")
    a(f"v_lshlrev_b32 v3, {int(math.log2(YSTRIDE))}, v1"); a("v_lshl_add_u32 v3, v2, 4, v3")
    a("s_lshl_b32 s22, s19, 3")
    for n in range(2):
        a(f"s_add_u32 s23, s22, {4*n}")
        a("v_add_u32 v4, s23, v1")
        a("v_cmp_eq_u32 vcc, s16, v4")
        a("v_mov_b32 v5, 0x40000000")
        a(f"v_cndmask_b32 v{6+n}, v3, v5, vcc")
    masks(8, "v0", "v4", "v5")
    for r in range(4): a(f"v_and_b32 v{8+r}, 0x3f803f80, v{8+r}")
    a(f"s_mov_b32 s27, 0x4000")
    D = 64
    def g_issue(G):
        for n in range(2):
            a(f"s_add_u32 s23, s22, {4*n}"); a(f"s_lshl_b32 s23, s23, {int(math.log2(YSTRIDE))}")
            for cb in range(5):
                d = G + 4*(5*n + cb)
                a(f"buffer_load_dwordx4 v[{d}:{d+3}], v{6+n}, s[40:43], s23 offen offset:{256*cb} sc1")
    def g_check(G, okl):
        a(f"v_max3_u32 v4, v{G}, v{G+1}, v{G+2}")
        a(f"v_max3_u32 v5, v{G+3}, v{G+4}, v{G+5}")
        for e in range(6, 40, 4):
            a(f"v_max3_u32 v4, v4, v{G+e}, v{G+e+1}")
            if e + 3 < 40: a(f"v_max3_u32 v5, v5, v{G+e+2}, v{G+e+3}")
        a("v_max_u32 v4, v4, v5")
        a("v_cmp_eq_u32 vcc, -1, v4")
        a("s_cmp_eq_u64 vcc, 0")
        a(f"s_cbranch_scc1 {okl}")
    def g_sum(G):
        for n in range(2):
            for cb in range(5):
                d = G + 4*(5*n + cb)
                c = "0" if n == 0 else f"v[{D+4*cb}:{D+4*cb+3}]"
                a(f"v_mfma_f32_16x16x32_bf16 v[{D+4*cb}:{D+4*cb+3}], v[8:11], v[{d}:{d+3}], {c}")
    GA, GB = 16, 96
    if pipepoll:
        g_issue(GA)
        a("s_sleep 4")
        g_issue(GB)
        a.label("L_gather")
        a("s_waitcnt vmcnt(10)")
        g_check(GA, "L_gathA")
        g_issue(GA)
        a("s_waitcnt vmcnt(10)")
        g_check(GB, "L_gathB")
        g_issue(GB)
        a("s_sub_u32 s27, s27, 1")
        a("s_cmp_lg_u32 s27, 0")
        a("s_cbranch_scc1 L_gather")
        a.label("L_gathA")
        stamp(12)
        g_sum(GA)
        a("s_branch L_gathered")
        a.label("L_gathB")
        stamp(12)
        g_sum(GB)
        a.label("L_gathered")
    else:
        a.label("L_gather")
        g_issue(GA)
        a("s_waitcnt vmcnt(0)")
        g_check(GA, "L_gathered")
        a("s_sub_u32 s27, s27, 1")
        a("s_cmp_lg_u32 s27, 0")
        a("s_cbranch_scc1 L_gather")
        a.label("L_gathered")
        stamp(12)
        g_sum(GA)
    a("v_lshlrev_b32 v3, 4, v1"); a("v_lshl_add_u32 v3, v2, 5, v3")
    a("s_add_u32 s21, s19, 4")
    a("s_mul_i32 s21, s21, 2560")
    a("v_add_u32 v3, s21, v3")
    a("s_mov_b32 exec_hi, 0")
    for cb in range(5):
        a(f"ds_write_b128 v3, v[{D+4*cb}:{D+4*cb+3}] offset:{YPART + 512*cb}")
    a("s_mov_b64 exec, -1")
    a.label("L_join3")
    a("s_waitcnt lgkmcnt(0)")
    a("s_barrier")
    a.label("L_end")
    a("s_endpgm")

    lines, nfix = a.finish()
    out = []
    out.append(HEADER.rstrip("\n"))
    out.append("; Override launch geometry by editing the next line (default: block=256,")
    out.append(f"; @launch grid=(256,1,1) block=(512,1,1) lds={LDS_BYTES}")
    out.append('.amdgcn_target "amdgcn-amd-amdhsa--gfx950"')
    out.append(".text"); out.append(f".globl {KN}"); out.append(".p2align 8"); out.append(f".type {KN},@function")
    out += [l if (l.endswith(":") or l.startswith(";")) else "    " + l for l in lines]
    out.append('.section .rodata,"a"'); out.append(".p2align 6"); out.append(f".amdhsa_kernel {KN}")
    out.append("  .amdhsa_next_free_vgpr 256"); out.append("  .amdhsa_next_free_sgpr 102"); out.append("  .amdhsa_accum_offset 256")
    out.append("  .amdhsa_group_segment_fixed_size 0"); out.append("  .amdhsa_kernarg_size 104"); out.append("  .amdhsa_user_sgpr_count 2")
    out.append("  .amdhsa_user_sgpr_kernarg_segment_ptr 1"); out.append("  .amdhsa_system_sgpr_workgroup_id_x 1"); out.append(".end_amdhsa_kernel")
    return "\n".join(out) + "\n", nfix

if __name__ == "__main__":
    kw = eval("dict(%s)" % (sys.argv[2] if len(sys.argv) > 2 else ""))
    s, n = gen(**kw)
    open(sys.argv[1], "w").write(s)
    print("nops inserted:", n, "bytes:", len(s))
```

```python
import sys, math, struct
sys.path.insert(0, "tools")
from asmlib import Asm

KN = "gated_mix__gqa_block_cached__glu_gated_reglu__decode_kernel"

def f2u(x): return struct.unpack("<I", struct.pack("<f", x))[0]

SLOT = 16384; NSLOT = 9
CTL = SLOT * NSLOT
O_LANDED = 0
O_NEXT = 16
O_QCNT = 32
O_QRDY = 36
O_GUCNT = 40
O_LAST = 44
O_MLCNT = 48
O_QPART = 256
O_QBF = O_QPART + 2048
O_GUPART = O_QBF + 256
O_APART = O_GUPART + 2048
O_END = O_APART + 3072
YPART = 0
LDS_BYTES = CTL + O_END
YSTRIDE = 2048

NT = 128
NCONS = 3
C1 = math.log2(math.e) / math.sqrt(128.0)
LOG2E = math.log2(math.e)

HEADER = open("gated_mix__gqa_block_cached__glu_gated_reglu__decode.s.ref").read().split("; Override launch")[0]

def gen(levels=(20, 24, 16), th=(192, -192), period=12, adapt=True, wflags="nt", kvflags="nt", swq=4, swf=3, rot=True, rotf=False, preload=True, arr=4*123, static_red=None, nosent=False, ffnfree=None, pipepoll=True, klast=True, cntshift=2, outflags="", earlyml=True, perturb=None, sentflags="sc1", mapB=False, sched=None, stamps=False, spin_sleep=1):
    a = Asm()
    levels = [tuple(n) if isinstance(n, (tuple, list)) else (n,)*4 for n in levels]
    for lv_ in levels:
        for n in lv_: assert n % 4 == 0 and 12 <= n <= 60
    O_G = 32
    TO = 0x40000
    uid = [0]
    def L(n): uid[0] += 1; return f"L_{n}_{uid[0]}"

    def lds_wait_ge(vaddr, off, sneed, vtmp, stmp, sto, sleep=spin_sleep, signed=True):
        l0 = L("spin"); l1 = L("spun")
        a(f"s_mov_b32 {sto}, {TO}")
        a.label(l0)
        a(f"ds_read_b32 {vtmp}, {vaddr} offset:{off}")
        a("s_waitcnt lgkmcnt(0)")
        a(f"v_readfirstlane_b32 {stmp}, {vtmp}")
        a(f"s_cmp_ge_i32 {stmp}, {sneed}")
        a(f"s_cbranch_scc1 {l1}")
        if sleep: a(f"s_sleep {sleep}")
        a(f"s_sub_u32 {sto}, {sto}, 1")
        a(f"s_cmp_lg_u32 {sto}, 0")
        a(f"s_cbranch_scc1 {l0}")
        a.label(l1)

    def stamp(idx, stmp0=96):
        if not stamps: return
        a(f"s_memrealtime s[{stmp0}:{stmp0+1}]")
        a("s_waitcnt lgkmcnt(0)")
        a(f"v_mov_b32 v252, s{stmp0}")
        a(f"v_mov_b32 v253, {idx*4}")
        a("s_mov_b64 s[98:99], exec")
        a("s_mov_b64 exec, 1")
        a("buffer_store_dword v252, v253, s[92:95], 0 offen")
        a("s_mov_b64 exec, s[98:99]")

    def stamp_s(sidx4, stmp0=96):
        if not stamps: return
        a(f"s_memrealtime s[{stmp0}:{stmp0+1}]")
        a("s_waitcnt lgkmcnt(0)")
        a(f"v_mov_b32 v252, s{stmp0}")
        a(f"v_mov_b32 v253, {sidx4}")
        a("s_mov_b64 s[98:99], exec")
        a("s_mov_b64 exec, 1")
        a("buffer_store_dword v252, v253, s[92:95], 0 offen")
        a("s_mov_b64 exec, s[98:99]")

    def masks(vbase, vlane, vt0, vt1):
        a(f"v_and_b32 {vt0}, 15, {vlane}")
        a(f"v_and_b32 {vt1}, 1, {vlane}")
        a(f"v_sub_u32 {vt1}, 0, {vt1}")
        a(f"v_xor_b32 {vt1}, 0xffff, {vt1}")
        a(f"v_lshrrev_b32 {vt0}, 1, {vt0}")
        for r in range(4):
            a(f"v_cmp_eq_u32 vcc, {r}, {vt0}")
            a(f"v_cndmask_b32 v{vbase+r}, 0, {vt1}, vcc")

    def gather_srd(part=3):
        if part & 1:
            a("s_load_dwordx2 s[40:41], s[0:1], 96")
            a(f"s_mul_i32 s44, s17, {32*YSTRIDE}")
            a(f"s_mov_b32 s42, {32*YSTRIDE}"); a("s_mov_b32 s43, 0x20000")
        if part & 2:
            a("s_waitcnt lgkmcnt(0)")
            a("s_add_u32 s40, s40, s44"); a("s_addc_u32 s41, s41, 0")

    a.label(KN)
    a("s_cmp_ge_u32 s2, 256")
    a("s_cbranch_scc1 L_end")
    a("s_load_dwordx4 s[4:7], s[0:1], 8")
    a("v_lshrrev_b32 v1, 6, v0")
    a("v_and_b32 v0, 63, v0")
    a("s_and_b32 s16, s2, 7")
    a("s_lshl_b32 s16, s16, 2")
    a("s_bfe_u32 s3, s2, 0x20006" if mapB else "s_bfe_u32 s3, s2, 0x20003")
    a("v_readfirstlane_b32 s19, v1")
    a("s_add_u32 s16, s16, s3")
    a("s_bfe_u32 s17, s2, 0x30003" if mapB else "s_lshr_b32 s17, s2, 5")
    a("s_lshl_b32 s18, s17, 5")
    a("s_add_u32 s18, s18, s16")
    if stamps:
        a("s_load_dwordx2 s[92:93], s[0:1], 96")
        a("s_waitcnt lgkmcnt(0)")
        a("s_lshl_b32 s94, s2, 8")
        a("s_add_u32 s92, s92, s94"); a("s_addc_u32 s93, s93, 0")
        a("s_add_u32 s92, s92, 0x400000"); a("s_addc_u32 s93, s93, 0")
        a("s_mov_b32 s94, 256"); a("s_mov_b32 s95, 0x20000")
    a("s_cmp_lg_u32 s19, 0")
    a("s_cbranch_scc1 L_notloader")

    a.c("==== loader wave: K/V stream, LDS-DMA ring")
    a("s_setprio 3")
    if stamps: a("s_mov_b32 s91, 0")
    stamp(0)
    a("v_lshrrev_b32 v8, 4, v0")
    a("v_and_b32 v9, 15, v0")
    for m in range(4):
        a(f"v_add_u32 v10, {4*m}, v8")
        a("v_xor_b32 v10, v10, v9")
        a("v_lshlrev_b32 v10, 4, v10")
        a(f"v_lshl_add_u32 v{2+m}, v8, 8, v10")
    a("v_lshlrev_b32 v6, 4, v0")
    a(f"v_mov_b32 v7, {CTL}")
    a("s_lshr_b32 s20, s18, 12")
    a("s_lshl_b32 s21, s18, 20")
    a("s_mov_b32 s10, 0x100000"); a("s_mov_b32 s11, 0x20000")
    a("s_mov_b32 s14, 0x100000"); a("s_mov_b32 s15, 0x20000")
    a("s_waitcnt lgkmcnt(0)")
    a("s_add_u32 s8, s4, s21"); a("s_addc_u32 s9, s5, s20")
    a("s_add_u32 s12, s6, s21"); a("s_addc_u32 s13, s7, s20")
    def group(grp, sgo, sslot):
        srd = "s[8:11]" if grp < 2 else "s[12:15]"
        a(f"s_add_u32 m0, {sslot}, {grp*4096}")
        a(f"s_add_u32 s24, {sgo}, {(grp&1)*4096}")
        for m in range(4):
            vo = f"v{2+m}" if grp < 2 else "v6"
            a(f"buffer_load_dwordx4 {vo}, {srd}, s24 offen offset:{m*1024} {kvflags} lds")
    a("s_mov_b32 s22, 0"); a("s_mov_b32 s23, 0")
    for grp in range(4): group(grp, "s22", "s23")
    gather_srd(1)
    a("s_barrier")
    a("ds_read_b128 v[12:15], v7 offset:%d" % O_NEXT)
    gather_srd(2)
    a("s_mov_b32 s25, 1")
    a("s_mov_b32 s22, 8192"); a(f"s_mov_b32 s23, {SLOT}")
    a.label("L_ld_loop")
    a("s_waitcnt lgkmcnt(0)")
    a("v_min3_u32 v9, v12, v13, v14")
    a("v_readfirstlane_b32 s30, v15")
    a("v_readfirstlane_b32 s26, v9")
    a(f"s_add_u32 s26, s26, {NSLOT-1}")
    a("s_cmp_ge_u32 s26, s25")
    a(f"s_cbranch_scc1 L_ld_free")
    a(f"s_mov_b32 s27, {TO}")
    if stamps: a("s_add_u32 s91, s91, 1")
    a.label(f"L_ld_spin")
    a("s_sleep 1")
    a("ds_read_b128 v[12:15], v7 offset:%d" % O_NEXT)
    a("s_waitcnt lgkmcnt(0)")
    a("v_min3_u32 v9, v12, v13, v14")
    a("v_readfirstlane_b32 s26, v9")
    a(f"s_add_u32 s26, s26, {NSLOT-1}")
    a("s_cmp_ge_u32 s26, s25")
    a(f"s_cbranch_scc1 L_ld_free")
    a("s_sub_u32 s27, s27, 1")
    a("s_cmp_lg_u32 s27, 0")
    a(f"s_cbranch_scc1 L_ld_spin")
    a.label(f"L_ld_free")
    if stamps:
        a("s_and_b32 s90, s25, 7"); a("s_cmp_lg_u32 s90, 0"); a(f"s_cbranch_scc1 L_ld_nost")
        a("s_lshr_b32 s90, s25, 3"); a("s_add_u32 s90, s90, 16"); a("s_lshl_b32 s90, s90, 2")
        stamp_s("s90")
        a.label(f"L_ld_nost")
    a("s_lshl_b32 s28, s25, 2")
    lv = list(levels) if (adapt or sched) else [levels[0]]
    if sched:
        a("s_mov_b32 s30, 0")
        for (t0_, lvl) in sched:
            a(f"s_cmp_ge_u32 s25, {t0_}")
            a(f"s_cselect_b32 s30, {lvl}, s30")
    for k in range(1, len(lv)):
        a(f"s_cmp_eq_u32 s30, {k}")
        a(f"s_cbranch_scc1 L_ld_body{k}")
    for k, Ns in enumerate(lv):
        if k: a.label(f"L_ld_body{k}")
        for grp in range(4):
            N = Ns[grp]; NG = N // 4
            a(f"s_waitcnt vmcnt({N-4})")
            group(grp, "s22", "s23")
            a(f"s_add_i32 s29, s28, {grp - NG + 1}")
            a("v_mov_b32 v8, s29")
            a(f"ds_write_b32 v7, v8 offset:{O_LANDED}")
            if grp == 2: a("ds_read_b128 v[12:15], v7 offset:%d" % O_NEXT)
        if k != len(lv) - 1: a("s_branch L_ld_next")
    a.label("L_ld_next")
    a("s_add_u32 s22, s22, 8192")
    a(f"s_add_u32 s23, s23, {SLOT}")
    a(f"s_cmp_ge_u32 s23, {SLOT*NSLOT}")
    a("s_cselect_b32 s23, 0, s23")
    a("s_add_u32 s25, s25, 1")
    a(f"s_cmp_lt_u32 s25, {NT-2 if klast else NT}")
    a(f"s_cbranch_scc1 L_ld_loop")
    if klast:
        a(f"s_mov_b32 s27, {TO}")
        a.label("L_ld_spin2")
        a("ds_read_b128 v[12:15], v7 offset:%d" % O_NEXT)
        a("s_waitcnt lgkmcnt(0)")
        a("v_min3_u32 v9, v12, v13, v14")
        a("v_readfirstlane_b32 s26, v9")
        a(f"s_cmp_ge_u32 s26, {NT - NSLOT}")
        a("s_cbranch_scc1 L_ld_free2")
        a("s_sub_u32 s27, s27, 1")
        a("s_cmp_lg_u32 s27, 0")
        a("s_cbranch_scc1 L_ld_spin2")
        a.label("L_ld_free2")
        a(f"s_add_u32 s32, s22, 8192")
        a(f"s_add_u32 s33, s23, {SLOT}")
        a(f"s_cmp_ge_u32 s33, {SLOT*NSLOT}")
        a("s_cselect_b32 s33, 0, s33")
        NL = lv[-1][0]; NGl = NL // 4
        order = [(0, "s22", "s23"), (1, "s22", "s23"), (0, "s32", "s33"), (1, "s32", "s33"), (2, "s22", "s23"), (3, "s22", "s23"), (2, "s32", "s33"), (3, "s32", "s33")]
        for n, (grp, so, sl) in enumerate(order):
            a(f"s_waitcnt vmcnt({NL-4})")
            group(grp, so, sl)
            a(f"v_mov_b32 v8, {4*(NT-2) + n - NGl + 1}")
            a(f"ds_write_b32 v7, v8 offset:{O_LANDED}")
    NG = max(max(x) for x in lv) // 4
    for k in range(NG):
        a(f"s_waitcnt vmcnt({4*(NG-1-k)})")
        a(f"v_mov_b32 v8, {4*NT - NG + 1 + k}")
        a(f"ds_write_b32 v7, v8 offset:{O_LANDED}")
    stamp(1)
    if stamps:
        a("v_mov_b32 v252, s91"); a("v_mov_b32 v253, 60"); a("s_mov_b64 exec, 1")
        a("buffer_store_dword v252, v253, s[92:95], 0 offen"); a("s_mov_b64 exec, -1")
    a("s_setprio 0")
    a("s_branch L_join")

    a.label("L_notloader")
    a("s_cmp_ge_u32 s19, 4")
    a("s_cbranch_scc1 L_side")

    a.c("==== consumer waves")
    Q = 16; KD = 32; VD = 64; AO = 96; S = 128; O = 136; MK = 140; KA = 144; KC = 148
    VA, VC, MS, LS, AL, T0, T1, CT = 152, 153, 154, 155, 156, 157, 158, 159
    a("s_sub_u32 s20, s19, 1")
    a(f"v_mov_b32 v{CT}, {CTL}")
    masks(MK, "v0", f"v{T0}", f"v{T1}")
    a(f"v_lshrrev_b32 v1, 4, v0")
    a(f"v_and_b32 v2, 15, v0")
    for r in range(4):
        a(f"v_add_u32 v3, {4*r}, v1")
        a("v_xor_b32 v3, v3, v2")
        a("v_lshlrev_b32 v3, 4, v3")
        a(f"v_lshl_add_u32 v{KA+r}, v2, 8, v3")
    a("v_lshlrev_b32 v3, 4, v2")
    a(f"v_lshl_add_u32 v{VA}, v1, 10, v3")
    a(f"v_lshl_add_u32 v4, v1, 4, v{CT}")
    a(f"v_mov_b32 v{MS}, 0xff7fffff")
    a(f"v_mov_b32 v{LS}, 0")
    for r in range(4): a(f"v_mov_b32 v{O+r}, 0")
    a(f"s_mov_b32 s21, {f2u(C1):#x}")
    gather_srd()
    if adapt:
        a("s_load_dwordx2 s[32:33], s[0:1], 88")
        a("s_mul_i32 s31, s2, 171"); a("s_lshr_b32 s31, s31, 11"); a("s_mul_i32 s31, s31, 12"); a("s_sub_u32 s31, s2, s31")
        a("s_mov_b32 s34, 256"); a("s_mov_b32 s35, 0x20000")
        a("s_waitcnt lgkmcnt(0)")
    a("s_barrier")
    a("s_mov_b32 s22, s20")
    a("s_lshl_b32 s23, s20, 14")
    a("s_mov_b32 s28, -1")
    def c_addr():
        a("s_lshl_b32 s24, s22, 2")
        for r in range(4): a(f"v_add_u32 v{KC+r}, s23, v{KA+r}")
        a(f"v_add_u32 v{VC}, s23, v{VA}")
    def c_wait(tag):
        a("s_cmp_ge_i32 s28, s24")
        a(f"s_cbranch_scc1 L_c_{tag}")
        lds_wait_ge(f"v{CT}", O_LANDED, "s24", f"v{T0}", "s28", "s27")
        a.label(f"L_c_{tag}")
    def c_kreads(KD=KD):
        for u in range(2):
            for r in range(4):
                d = KD + (u*4+r)*4
                a(f"ds_read_b128 v[{d}:{d+3}], v{KC+r} offset:{u*4096}")
    def c_qk(waits, KD=KD):
        for u in range(2):
            for r in range(4):
                d = KD + (u*4+r)*4
                if waits: a(f"s_waitcnt lgkmcnt({7-(u*4+r)})")
                c = "0" if r == 0 else f"v[{S+4*u}:{S+4*u+3}]"
                a(f"v_mfma_f32_16x16x32_bf16 v[{S+4*u}:{S+4*u+3}], v[{d}:{d+3}], v[{Q+4*r}:{Q+4*r+3}], {c}")
    def c_softmax():
        a(f"v_max3_f32 v{T0}, v{S}, v{S+1}, v{S+2}")
        a(f"v_max3_f32 v{T1}, v{S+3}, v{S+4}, v{S+5}")
        a(f"v_max3_f32 v{T0}, v{T0}, v{S+6}, v{S+7}")
        a(f"v_max_f32 v{T0}, v{T0}, v{T1}")
        a(f"v_mul_f32 v{T0}, s21, v{T0}")
        a(f"v_max_f32 v{T0}, v{T0}, v{MS}")
        a(f"v_max_f32_dpp v{T0}, v{T0}, v{T0} row_bcast:15 row_mask:0xa bank_mask:0xf")
        a(f"v_max_f32_dpp v{T0}, v{T0}, v{T0} row_bcast:31 row_mask:0xc bank_mask:0xf")
        a(f"v_readlane_b32 s29, v{T0}, 63")
        a(f"v_subrev_f32 v{AL}, s29, v{MS}")
        a(f"v_mov_b32 v{MS}, s29")
        a(f"v_exp_f32 v{AL}, v{AL}")
        for k in range(8): a(f"v_fma_f32 v{S+k}, v{S+k}, s21, -v{MS}")
        for k in range(8): a(f"v_exp_f32 v{S+k}, v{S+k}")
        a(f"v_mul_f32 v{LS}, v{LS}, v{AL}")
        for r in range(4): a(f"v_mul_f32 v{O+r}, v{O+r}, v{AL}")
        for k in range(8):
            a(f"v_cvt_pk_bf16_f32 v{T1}, v{S+k}, v{S+k}")
            a(f"v_add_f32 v{LS}, v{LS}, v{S+k}")
            for r in range(4): a(f"v_and_b32 v{AO+4*k+r}, v{T1}, v{MK+r}")
    def c_vreads(VD=VD):
        for k in range(8):
            u, r = k >> 2, k & 3
            d = VD + 4*k
            a(f"ds_read_b128 v[{d}:{d+3}], v{VC} offset:{8192 + u*4096 + r*256}")
    def c_advance():
        a("s_add_u32 s22, s22, %d" % NCONS)
        a(f"v_mov_b32 v{T0}, s22")
        a("s_lshl_b32 s30, s20, 2")
        a(f"v_add_u32 v{T1}, s30, v{CT}")
        a(f"s_add_u32 s23, s23, {NCONS*SLOT}")
        a(f"s_sub_u32 s30, s23, {NSLOT*SLOT}")
        a(f"s_cmp_ge_u32 s23, {NSLOT*SLOT}")
        a("s_cselect_b32 s23, s30, s23")
    def c_free():
        a(f"ds_write_b32 v{T1}, v{T0} offset:{O_NEXT}")
    def c_pv(waits, VD=VD):
        for k in range(8):
            d = VD + 4*k
            if waits:
                a(f"s_waitcnt lgkmcnt({7-k})")
                if k == 7: c_free()
            a(f"v_mfma_f32_16x16x32_bf16 v[{O}:{O+3}], v[{AO+4*k}:{AO+4*k+3}], v[{d}:{d+3}], v[{O}:{O+3}]")
    def c_checkpoint(tag):
        assert period == 12
        a(f"s_sub_u32 s30, s22, {NCONS}")
        a("s_cmp_lg_u32 s30, s31")
        a(f"s_cbranch_scc1 L_c_nocp{tag}")
        a(f"s_add_u32 s31, s31, {period}")
        a(f"v_mov_b32 v{T0}, 1"); a(f"v_mov_b32 v{T1}, {O_G}")
        a("s_mov_b64 exec, 1")
        a(f"buffer_atomic_add v{T0}, v{T1}, s[32:35], 0 offen sc0")
        a("s_waitcnt vmcnt(0)")
        a("s_mov_b64 exec, -1")
        a(f"v_readfirstlane_b32 s36, v{T0}")
        a("s_add_u32 s37, s30, 1")
        a("s_lshl_b32 s37, s37, 8")
        a(f"s_mul_i32 s36, s36, {period}")
        a("s_sub_i32 s36, s36, s37")
        a("s_mov_b32 s37, 0")
        for k, t in enumerate(th):
            a(f"s_cmp_gt_i32 s36, {t}" if t > 0 else f"s_cmp_lt_i32 s36, {t}")
            a(f"s_cselect_b32 s37, {k+1}, s37")
        a(f"v_mov_b32 v{T0}, s37")
        a(f"ds_write_b32 v{CT}, v{T0} offset:{O_NEXT + 12}")
        if stamps:
            a("s_lshr_b32 s90, s31, 2"); a("s_and_b32 s90, s90, 0xfc"); a("s_sub_u32 s90, s31, 12")
            a("s_mul_i32 s90, s90, 171"); a("s_lshr_b32 s90, s90, 11"); a("s_add_u32 s90, s90, 40"); a("s_lshl_b32 s90, s90, 2")
            a("v_mov_b32 v252, s36"); a("v_mov_b32 v253, s90"); a("s_mov_b64 exec, 1")
            a("buffer_store_dword v252, v253, s[92:95], 0 offen"); a("s_mov_b64 exec, -1")
        a.label(f"L_c_nocp{tag}")
    def c_ml():
        a(f"v_add_f32_dpp v{LS}, v{LS}, v{LS} row_bcast:15 row_mask:0xa bank_mask:0xf")
        a(f"v_add_f32_dpp v{LS}, v{LS}, v{LS} row_bcast:31 row_mask:0xc bank_mask:0xf")
        a(f"v_readlane_b32 s29, v{LS}, 63")
        a("s_lshl_b32 s30, s20, 10")
        a("v_lshrrev_b32 v1, 4, v0"); a("v_and_b32 v2, 15, v0")
        a("v_lshlrev_b32 v1, 4, v1"); a("v_lshl_add_u32 v1, v2, 5, v1")
        a(f"v_add_u32 v1, s30, v1"); a(f"v_add_u32 v1, v1, v{CT}")
        a(f"v_add_u32 v2, s30, v{CT}")
        a(f"v_mov_b32 v{MS+1}, s29")
        a(f"v_mov_b32 v3, 1")
        a("s_mov_b64 exec, 1")
        a(f"ds_write_b64 v2, v[{MS}:{MS+1}] offset:{O_APART + 512}")
        a("s_waitcnt lgkmcnt(0)")
        a(f"ds_add_u32 v{CT}, v3 offset:{O_MLCNT}")
        a("s_mov_b64 exec, -1")
    PK = [(KD, VD), (160, 192)][:int(preload)]
    for n, (kd, vd) in enumerate(PK):
        c_addr()
        a("s_add_u32 s24, s24, 4")
        c_wait(f"first{n}")
        c_kreads(kd)
        a("s_waitcnt lgkmcnt(0)")
        c_vreads(vd)
        c_advance()
        a("s_waitcnt lgkmcnt(0)")
        c_free()
    lds_wait_ge(f"v{CT}", O_QRDY, "1", f"v{T0}", "s26", "s27")
    stamp(9)
    for r in range(4):
        a(f"ds_read_b128 v[{Q+4*r}:{Q+4*r+3}], v4 offset:{O_QBF + 64*r}")
    if PK: a("s_waitcnt lgkmcnt(0)")
    for n, (kd, vd) in enumerate(PK):
        c_qk(False, kd)
        c_softmax()
        c_pv(False, vd)
        assert not adapt or len(PK) == 1
        if adapt: c_checkpoint("b")
    a.label("L_c_loop")
    c_addr()
    a("s_add_u32 s24, s24, 2")
    if klast:
        a(f"s_cmp_eq_u32 s22, {NT-1}"); a("s_cselect_b32 s30, 2, 0"); a("s_sub_u32 s24, s24, s30")
    c_wait("kok")
    c_kreads()
    c_qk(True)
    a("s_lshl_b32 s24, s22, 2"); a("s_add_u32 s24, s24, 4")
    if klast:
        a(f"s_cmp_eq_u32 s22, {NT-2}"); a("s_cselect_b32 s30, 2, 0"); a("s_add_u32 s24, s24, s30")
    c_softmax()
    if earlyml:
        a(f"s_add_u32 s30, s22, {NCONS}")
        a(f"s_cmp_lt_u32 s30, {NT}")
        a("s_cbranch_scc1 L_c_notlast")
        c_ml()
        lds_wait_ge(f"v{CT}", O_LANDED, "s24", f"v{T0}", "s28", "s27", sleep=0)
        a.label("L_c_notlast")
    c_wait("vok")
    c_vreads()
    c_advance()
    c_pv(True)
    if adapt: c_checkpoint("a")
    a(f"s_cmp_lt_u32 s22, {NT}")
    a("s_cbranch_scc1 L_c_loop")
    if not earlyml: c_ml()
    a("s_mov_b32 exec_hi, 0")
    a(f"ds_write_b128 v1, v[{O}:{O+3}] offset:{O_APART}")
    a("s_mov_b64 exec, -1")
    stamp(2)
    a("s_branch L_join")

    a.label("L_side")
    a.c("==== side waves: q projection, gate, FFN, output projection")
    MKs = 4; A0 = 8; A1 = 52; Y = 12; X = 32; QA = 56; W = 64
    VAD = 60; VO = 62; VT0, VT1, VT2, VT3 = 224, 225, 226, 227; CTs = 228; VG = 229; VG1 = 230
    a("s_sub_u32 s20, s19, 4")
    a("s_mov_b32 s70, 256"); a("s_mov_b32 s71, 0x20000")
    a("s_load_dwordx2 s[44:45], s[0:1], 0")
    a("s_load_dwordx4 s[24:27], s[0:1], 24")
    a("s_load_dwordx4 s[28:31], s[0:1], 48")
    a("s_load_dwordx4 s[32:35], s[0:1], 64")
    a(f"v_mov_b32 v{CTs}, {CTL}")
    a("v_lshrrev_b32 v1, 4, v0")
    a("v_and_b32 v2, 15, v0")
    a("s_cmp_lg_u32 s20, 0")
    a("s_cbranch_scc1 L_s_noinit")
    a("v_mov_b32 v8, 0"); a("v_mov_b32 v9, 0"); a("v_mov_b32 v10, 0"); a("v_mov_b32 v11, 0")
    a(f"ds_write_b128 v{CTs}, v[8:11] offset:0")
    a(f"ds_write_b128 v{CTs}, v[8:11] offset:32")
    a(f"ds_write_b128 v{CTs}, v[8:11] offset:48")
    a("v_mov_b32 v9, 1"); a("v_mov_b32 v10, 2"); a("v_mov_b32 v11, 0")
    a(f"ds_write_b128 v{CTs}, v[8:11] offset:{O_NEXT}")
    a.label("L_s_noinit")
    a("v_lshlrev_b32 v3, 3, v1")
    a(f"v_lshlrev_b32 v{VT0}, 15, v1")
    a(f"v_lshl_add_u32 v{VT0}, v2, 4, v{VT0}")
    if rot: a("s_lshl_b32 s46, s17, 2"); a("s_add_u32 s46, s46, s20")
    else: a("s_mov_b32 s46, s20")
    for st in range(10):
        a(f"s_add_u32 s21, s46, {4*st}")
        a("s_sub_u32 s22, s21, 40")
        a("s_cmp_ge_u32 s21, 40")
        a(f"s_cselect_b32 s{50+st}, s22, s21")
    a("s_waitcnt lgkmcnt(0)")
    a("s_mul_i32 s21, s17, 1280")
    a("s_add_u32 s4, s44, s21"); a("s_addc_u32 s5, s45, 0"); a("s_mov_b32 s6, 1280"); a("s_mov_b32 s7, 0x20000")
    a("s_lshl_b32 s21, s16, 8")
    a("s_add_u32 s8, s24, s21"); a("s_addc_u32 s9, s25, 0")
    a(f"s_sub_u32 s10, {640*8192}, s21"); a("s_mov_b32 s11, 0x20000")
    for k in range(10):
        a(f"s_lshl_b32 s21, s{50+k}, 5")
        a(f"buffer_load_dwordx2 v[{X+2*k}:{X+2*k+1}], v3, s[4:7], s21 offen")
    def wq_issue(n):
        k, r = n >> 2, n & 3
        a(f"s_lshl_b32 s21, s{50+k}, 17")
        if r: a(f"s_add_u32 s21, s21, {r*8192}")
        a(f"buffer_load_dwordx4 v[{W+4*n}:{W+4*n+3}], v{VT0}, s[8:11], s21 offen {wflags}")
    for n in range(swq): wq_issue(n)
    stamp(6)
    a("s_barrier")
    masks(MKs, "v0", f"v{VT1}", f"v{VT2}")
    a("s_mov_b32 s36, 0x01000100"); a("s_mov_b32 s37, 0x03020302")
    ns = 1 if stamps else 0
    a(f"s_waitcnt vmcnt({swq + ns})")
    stamp(7)
    def gemv_steps(nblk, acc, first_zero, waitfn, postfn=None):
        for k in range(nblk):
            for r in range(4):
                n = 4*k + r
                A = A0 if n % 2 == 0 else A1
                xs = X + 2*k + (r >> 1)
                a(f"v_perm_b32 v{VT1}, v{xs}, v{xs}, s{36 + (r & 1)}")
                for q in range(4): a(f"v_and_b32 v{A+q}, v{VT1}, v{MKs+q}")
                waitfn(n)
                c = "0" if (n == 0 and first_zero) else f"v[{acc}:{acc+3}]"
                a(f"v_mfma_f32_16x16x32_bf16 v[{acc}:{acc+3}], v[{A}:{A+3}], v[{W+4*n}:{W+4*n+3}], {c}")
    def window(issue, total, win):
        def f(n):
            a(f"s_waitcnt vmcnt({min(win, total - n) - 1})")
            if n + win < total: issue(n + win)
        return f
    gemv_steps(10, QA, True, window(wq_issue, 40, swq))
    stamp(8)
    a("v_lshlrev_b32 v3, 4, v1"); a("v_lshl_add_u32 v3, v2, 5, v3")
    a("s_lshl_b32 s21, s20, 9")
    a(f"v_add3_u32 v{VT2}, v3, s21, v{CTs}")
    a("s_mov_b32 exec_hi, 0")
    a(f"ds_write_b128 v{VT2}, v[{QA}:{QA+3}] offset:{O_QPART}")
    a("s_mov_b64 exec, -1")
    a(f"v_mov_b32 v{VT1}, 1")
    a("s_waitcnt lgkmcnt(0)")
    a("s_mov_b64 exec, 1")
    a(f"ds_add_rtn_u32 v{VT1}, v{CTs}, v{VT1} offset:{O_QCNT}")
    a("s_mov_b64 exec, -1")
    a("s_waitcnt lgkmcnt(0)")
    a(f"v_readfirstlane_b32 s21, v{VT1}")
    a("s_cmp_lg_u32 s21, 3")
    a("s_cbranch_scc1 L_s_qdone")
    a(f"v_lshl_add_u32 v{VT2}, v0, 3, v{CTs}")
    for c in range(4):
        a(f"ds_read_b64 v[{W+2*c}:{W+2*c+1}], v{VT2} offset:{O_QPART + 512*c}")
    a("s_waitcnt lgkmcnt(0)")
    a(f"v_add_f32 v{W}, v{W}, v{W+2}"); a(f"v_add_f32 v{W+1}, v{W+1}, v{W+3}")
    a(f"v_add_f32 v{W+4}, v{W+4}, v{W+6}"); a(f"v_add_f32 v{W+5}, v{W+5}, v{W+7}")
    a(f"v_add_f32 v{W}, v{W}, v{W+4}"); a(f"v_add_f32 v{W+1}, v{W+1}, v{W+5}")
    a(f"v_cvt_pk_bf16_f32 v{W}, v{W}, v{W+1}")
    a(f"v_lshl_add_u32 v{VT2}, v0, 2, v{CTs}")
    a(f"ds_write_b32 v{VT2}, v{W} offset:{O_QBF}")
    a(f"v_mov_b32 v{VT1}, 1")
    a("s_waitcnt lgkmcnt(0)")
    a(f"ds_write_b32 v{CTs}, v{VT1} offset:{O_QRDY}")
    a.label("L_s_qdone")
    stamp(3)
    a("s_cmp_lg_u32 s20, 0")
    a("s_cbranch_scc1 L_s_nosent")
    a("s_load_dwordx2 s[64:65], s[0:1], 96")
    a("s_load_dwordx2 s[68:69], s[0:1], 88")
    a("v_lshlrev_b32 v3, 4, v0")
    for e in range(4): a(f"v_mov_b32 v{W+e}, -1")
    a(f"s_mul_i32 s21, s18, {YSTRIDE}")
    a("s_mov_b32 s66, 1280"); a("s_mov_b32 s67, 0x20000")
    a("s_waitcnt lgkmcnt(0)")
    a("s_add_u32 s64, s64, s21"); a("s_addc_u32 s65, s65, 0")
    for q in range(2):
        if not nosent: a(f"buffer_store_dwordx4 v[{W}:{W+3}], v3, s[64:67], 0 offen offset:{1024*q} {sentflags}")
    a("s_waitcnt vmcnt(0)")
    a.label("L_s_nosent")
    a("s_mov_b32 s8, s34"); a("s_mov_b32 s9, s35"); a("s_mov_b32 s10, 1280"); a("s_mov_b32 s11, 0x20000")
    a("v_lshlrev_b32 v3, 4, v0")
    a(f"buffer_load_dwordx4 v[{W}:{W+3}], v3, s[4:7], 0 offen")
    a(f"buffer_load_dwordx4 v[{W+4}:{W+7}], v3, s[4:7], 0 offen offset:1024")
    a(f"buffer_load_dwordx4 v[{W+8}:{W+11}], v3, s[8:11], 0 offen")
    a(f"buffer_load_dwordx4 v[{W+12}:{W+15}], v3, s[8:11], 0 offen offset:1024")
    a(f"v_mov_b32 v{VG}, 0")
    a("s_waitcnt vmcnt(0)")
    for k in range(8):
        xs, wsr = W + k, W + 8 + k
        a(f"v_lshlrev_b32 v{VT0}, 16, v{xs}"); a(f"v_lshlrev_b32 v{VT1}, 16, v{wsr}")
        a(f"v_and_b32 v{VT2}, 0xffff0000, v{xs}"); a(f"v_and_b32 v{VT3}, 0xffff0000, v{wsr}")
        a(f"v_mul_f32 v{VT0}, v{VT0}, v{VT1}"); a(f"v_mul_f32 v{VT2}, v{VT2}, v{VT3}")
        a(f"v_cvt_pk_bf16_f32 v{VT0}, v{VT0}, v{VT2}")
        a(f"v_lshlrev_b32 v{VT1}, 16, v{VT0}"); a(f"v_and_b32 v{VT2}, 0xffff0000, v{VT0}")
        a(f"v_add_f32 v{VG}, v{VG}, v{VT1}"); a(f"v_add_f32 v{VG}, v{VG}, v{VT2}")
    for sh in (1, 2, 4, 8):
        a(f"v_add_f32_dpp v{VG}, v{VG}, v{VG} row_ror:{sh} row_mask:0xf bank_mask:0xf")
    a(f"v_add_f32_dpp v{VG}, v{VG}, v{VG} row_bcast:15 row_mask:0xa bank_mask:0xf")
    a(f"v_add_f32_dpp v{VG}, v{VG}, v{VG} row_bcast:31 row_mask:0xc bank_mask:0xf")
    a(f"v_readlane_b32 s21, v{VG}, 63")
    a(f"v_mov_b32 v{VG}, s21")
    a(f"v_cvt_pk_bf16_f32 v{VG}, v{VG}, v{VG}")
    a(f"v_and_b32 v{VG}, 0xffff0000, v{VG}")
    a(f"v_mul_f32 v{VG}, {f2u(-LOG2E):#x}, v{VG}")
    a(f"v_exp_f32 v{VG}, v{VG}")
    a(f"v_add_f32 v{VG}, 1.0, v{VG}")
    a(f"v_rcp_f32 v{VG}, v{VG}")
    a(f"v_cvt_pk_bf16_f32 v{VG}, v{VG}, v{VG}")
    a(f"v_and_b32 v{VG}, 0xffff0000, v{VG}")
    a(f"v_sub_f32 v{VG1}, 1.0, v{VG}")
    a(f"v_cvt_pk_bf16_f32 v{VG1}, v{VG1}, v{VG1}")
    a(f"v_and_b32 v{VG1}, 0xffff0000, v{VG1}")
    for r in range(20): a(f"v_mov_b32 v{Y+r}, 0")
    free = sorted(ffnfree) if ffnfree else [27, 28, 29, 30, 31]
    assert len(free) == 5
    a("s_mov_b32 s62, s16")
    for f_ in free:
        a(f"s_cmp_gt_u32 s16, {f_}"); a("s_cselect_b32 s21, 1, 0"); a("s_sub_u32 s62, s62, s21")
    for f_ in free:
        a(f"s_cmp_eq_u32 s16, {f_}"); a("s_cselect_b32 s62, 27, s62")
    a("s_cmp_ge_u32 s62, 27")
    a("s_cbranch_scc1 L_s_noffn")
    if rot and not rotf:
        a("v_lshrrev_b32 v3, 4, v0"); a("v_lshlrev_b32 v3, 3, v3")
        for k in range(10):
            a(f"s_add_u32 s{50+k}, s20, {4*k}")
            a(f"s_lshl_b32 s21, s{50+k}, 5")
            a(f"buffer_load_dwordx2 v[{X+2*k}:{X+2*k+1}], v3, s[4:7], s21 offen")
        a("s_waitcnt vmcnt(0)")
    a("v_cmp_gt_u32 vcc, 8, v2")
    a(f"v_mov_b32 v{VT0}, s30"); a(f"v_mov_b32 v{VT1}, s28")
    a(f"v_cndmask_b32 v{VAD}, v{VT0}, v{VT1}, vcc")
    a(f"v_mov_b32 v{VT0}, s31"); a(f"v_mov_b32 v{VT1}, s29")
    a(f"v_cndmask_b32 v{VAD+1}, v{VT0}, v{VT1}, vcc")
    a(f"s_movk_i32 s21, {4*3456}")
    a(f"v_mul_lo_u32 v{VT0}, v1, s21")
    a(f"v_and_b32 v{VT1}, 7, v2")
    a(f"v_lshl_add_u32 v{VT0}, v{VT1}, 4, v{VT0}")
    a("s_lshl_b32 s21, s62, 7")
    a(f"v_add_u32 v{VT0}, s21, v{VT0}")
    a(f"v_mov_b32 v{VT1}, 0")
    VB = 250
    a(f"v_lshl_add_u64 v[{VB}:{VB+1}], v[{VT0}:{VT1}], 0, v[{VAD}:{VAD+1}]")
    a("s_mov_b32 s38, 6912"); a("s_mov_b32 s39, 0"); a("s_mov_b32 s41, 0")
    def gu_issue(n):
        k, r = n >> 2, n & 3
        if r == 0:
            a(f"s_mul_i32 s40, s{50+k}, {16*3456}")
            a(f"v_lshl_add_u64 v[{VAD}:{VAD+1}], v[{VB}:{VB+1}], 0, s[40:41]")
        a(f"global_load_dwordx4 v[{W+4*n}:{W+4*n+3}], v[{VAD}:{VAD+1}], off offset:{(r&1)*3456} {wflags}")
        if r == 1: a(f"v_lshl_add_u64 v[{VAD}:{VAD+1}], v[{VAD}:{VAD+1}], 0, s[38:39]")
    for n in range(swf): gu_issue(n)
    gemv_steps(10, QA, True, window(gu_issue, 40, swf))
    a("v_lshlrev_b32 v3, 4, v1"); a("v_lshl_add_u32 v3, v2, 5, v3")
    a("s_lshl_b32 s21, s20, 9")
    a(f"v_add3_u32 v{VT2}, v3, s21, v{CTs}")
    a("s_mov_b32 exec_hi, 0")
    a(f"ds_write_b128 v{VT2}, v[{QA}:{QA+3}] offset:{O_GUPART}")
    a("s_mov_b64 exec, -1")
    a(f"v_mov_b32 v{VT1}, 1")
    a("s_waitcnt lgkmcnt(0)")
    a("s_mov_b64 exec, 1")
    a(f"ds_add_u32 v{CTs}, v{VT1} offset:{O_GUCNT}")
    a("s_mov_b64 exec, -1")
    a("s_mov_b32 s8, s32"); a("s_mov_b32 s9, s33"); a(f"s_mov_b32 s10, {1728*1280}"); a("s_mov_b32 s11, 0x20000")
    a("s_lshl_b32 s21, s20, 4")
    a(f"v_lshl_add_u32 v{VT0}, v1, 2, s21")
    a("s_movk_i32 s21, 1280")
    a(f"v_mul_lo_u32 v{VO}, v{VT0}, s21")
    a(f"v_lshl_add_u32 v{VO}, v2, 4, v{VO}")
    a(f"s_mul_i32 s22, s62, {64*1280}")
    def wd_issue(n):
        r, cb = n // 5, n % 5
        a(f"s_add_u32 s21, s22, {r*1280}")
        a(f"buffer_load_dwordx4 v[{W+4*n}:{W+4*n+3}], v{VO}, s[8:11], s21 offen offset:{cb*256} {wflags}")
    for n in range(20):
        if n >= swf: a(f"s_waitcnt vmcnt({swf-1})")
        wd_issue(n)
    lds_wait_ge(f"v{CTs}", O_GUCNT, "4", f"v{VT1}", "s43", "s42")
    a(f"v_lshl_add_u32 v{VT0}, v{VT0}, 2, v{CTs}")
    G0 = 160
    for c in range(4):
        a(f"ds_read_b128 v[{G0+8*c}:{G0+8*c+3}], v{VT0} offset:{O_GUPART + 512*c}")
        a(f"ds_read_b128 v[{G0+8*c+4}:{G0+8*c+7}], v{VT0} offset:{O_GUPART + 512*c + 256}")
    a("s_waitcnt lgkmcnt(0)")
    for e in range(8):
        a(f"v_add_f32 v{G0+e}, v{G0+e}, v{G0+8+e}")
        a(f"v_add_f32 v{G0+16+e}, v{G0+16+e}, v{G0+24+e}")
    for e in range(8): a(f"v_add_f32 v{G0+e}, v{G0+e}, v{G0+16+e}")
    for r in range(4):
        gt, up = G0 + r, G0 + 4 + r
        a(f"v_cvt_pk_bf16_f32 v{VT1}, v{gt}, v{up}")
        a(f"v_lshlrev_b32 v{gt}, 16, v{VT1}")
        a(f"v_and_b32 v{up}, 0xffff0000, v{VT1}")
        a(f"v_max_f32 v{gt}, 0, v{gt}")
        a(f"v_mul_f32 v{gt}, v{gt}, v{up}")
        a(f"v_cvt_pk_bf16_f32 v{gt}, v{gt}, v{gt}")
        a(f"v_and_b32 v{gt}, 0xffff0000, v{gt}")
        a(f"v_mul_f32 v{gt}, v{gt}, v{VG1}")
    for r in range(4):
        A = A0 if r % 2 == 0 else A1
        a(f"v_cvt_pk_bf16_f32 v{VT1}, v{G0+r}, v{G0+r}")
        for q in range(4): a(f"v_and_b32 v{A+q}, v{VT1}, v{MKs+q}")
        for cb in range(5):
            n = 5*r + cb
            if n == 0: a("s_waitcnt vmcnt(0)")
            a(f"v_mfma_f32_16x16x32_bf16 v[{Y+4*cb}:{Y+4*cb+3}], v[{A}:{A+3}], v[{W+4*n}:{W+4*n+3}], v[{Y+4*cb}:{Y+4*cb+3}]")
    a.label("L_s_noffn")
    a("s_mov_b32 s8, s26"); a("s_mov_b32 s9, s27"); a(f"s_mov_b32 s10, {4096*1280}"); a("s_mov_b32 s11, 0x20000")
    a("s_lshl_b32 s21, s20, 5")
    a(f"v_lshl_add_u32 v{VT0}, v1, 2, s21")
    a("s_movk_i32 s21, 1280")
    a(f"v_mul_lo_u32 v{VO}, v{VT0}, s21")
    a(f"v_lshl_add_u32 v{VO}, v2, 4, v{VO}")
    a(f"s_mul_i32 s22, s16, {128*1280}")
    for n in range(40):
        k, r, cb = n // 20, (n // 5) % 4, n % 5
        if n >= swf: a(f"s_waitcnt vmcnt({swf-1})")
        a(f"s_add_u32 s21, s22, {(16*k + r)*1280}")
        a(f"buffer_load_dwordx4 v[{W+4*n}:{W+4*n+3}], v{VO}, s[8:11], s21 offen offset:{cb*256} {wflags}")
    a("s_waitcnt vmcnt(0)")
    stamp(4)
    a("s_cmp_lg_u32 s20, 0")
    a("s_cbranch_scc1 L_s_noarr")
    if static_red is None:
        lds_wait_ge(f"v{CTs}", O_LANDED, str(arr - 10), f"v{VT1}", "s43", "s42", sleep=32)
        lds_wait_ge(f"v{CTs}", O_LANDED, str(arr), f"v{VT1}", "s43", "s42", sleep=2)
        a(f"s_lshl_b32 s21, s17, {cntshift}")
        a(f"v_mov_b32 v{VT2}, s21"); a(f"v_mov_b32 v{VT1}, 1")
        a("s_mov_b64 exec, 1")
        a(f"buffer_atomic_add v{VT1}, v{VT2}, s[68:71], 0 offen sc0")
        a("s_waitcnt vmcnt(0)")
        a(f"ds_write_b32 v{CTs}, v{VT1} offset:{O_LAST}")
        a("s_mov_b64 exec, -1")
    else:
        a(f"s_cmp_eq_u32 s16, {static_red}")
        a("s_cselect_b32 s21, 31, 0")
        a(f"v_mov_b32 v{VT1}, s21")
        a(f"ds_write_b32 v{CTs}, v{VT1} offset:{O_LAST}")
    a("s_waitcnt lgkmcnt(0)")
    a.label("L_s_noarr")
    a("s_load_dwordx2 s[12:13], s[0:1], 80")
    a("s_load_dwordx2 s[76:77], s[0:1], 96")
    a(f"v_lshl_add_u32 v{VT0}, v{VT0}, 2, v{CTs}")
    M0r = 232
    OP = 32
    def scales():
        for c in range(3):
            a(f"ds_read_b64 v[{M0r+2*c}:{M0r+2*c+1}], v{CTs} offset:{O_APART + 1024*c + 512}")
        a("s_waitcnt lgkmcnt(0)")
        a(f"v_max3_f32 v{VT1}, v{M0r}, v{M0r+2}, v{M0r+4}")
        for c in range(3): a(f"v_sub_f32 v{M0r+2*c}, v{M0r+2*c}, v{VT1}")
        for c in range(3): a(f"v_exp_f32 v{M0r+2*c}, v{M0r+2*c}")
        a(f"v_mul_f32 v{VT1}, v{M0r}, v{M0r+1}")
        a(f"v_fma_f32 v{VT1}, v{M0r+2}, v{M0r+3}, v{VT1}")
        a(f"v_fma_f32 v{VT1}, v{M0r+4}, v{M0r+5}, v{VT1}")
        a(f"v_rcp_f32 v{VT1}, v{VT1}")
        a(f"v_mul_f32 v{VT1}, v{VT1}, v{VG}")
        for c in range(3): a(f"v_mul_f32 v{M0r+2*c}, v{M0r+2*c}, v{VT1}")
    a("s_waitcnt lgkmcnt(0)")
    a("s_mul_i32 s21, s17, 1280")
    a("s_add_u32 s12, s12, s21"); a("s_addc_u32 s13, s13, 0"); a("s_mov_b32 s14, 1280"); a("s_mov_b32 s15, 0x20000")
    a(f"s_mul_i32 s21, s18, {YSTRIDE}")
    a("s_add_u32 s76, s76, s21"); a("s_addc_u32 s77, s77, 0"); a("s_mov_b32 s78, 1280"); a("s_mov_b32 s79, 0x20000")
    if earlyml:
        lds_wait_ge(f"v{CTs}", O_LANDED, "498", f"v{VT1}", "s43", "s42", sleep=32)
        lds_wait_ge(f"v{CTs}", O_MLCNT, "3", f"v{VT1}", "s43", "s42", sleep=2)
        scales()
    a("s_barrier")
    stamp(10)
    for c in range(3):
        for k in range(2):
            d = OP + (c*2 + k)*4
            a(f"ds_read_b128 v[{d}:{d+3}], v{VT0} offset:{O_APART + 1024*c + 64*k}")
    if not earlyml: scales()
    a("s_waitcnt lgkmcnt(0)")
    OV = 240
    AA = [56, 8]
    def prep(n0):
        k, r = n0 >> 2, n0 & 3
        e = OV + n0; A = AA[n0 % 2]
        return [f"v_mul_f32 v{e}, v{OP + k*4 + r}, v{M0r}",
                f"v_fma_f32 v{e}, v{OP + (2+k)*4 + r}, v{M0r+2}, v{e}",
                f"v_fma_f32 v{e}, v{OP + (4+k)*4 + r}, v{M0r+4}, v{e}",
                f"v_cvt_pk_bf16_f32 v{VT1}, v{e}, v{e}"] + [f"v_and_b32 v{A+q}, v{VT1}, v{MKs+q}" for q in range(4)]
    for i_ in prep(0): a(i_)
    for n0 in range(8):
        A = AA[n0 % 2]
        fill = prep(n0 + 1) if n0 < 7 else []
        for cb in range(5):
            n = n0*5 + cb
            a(f"v_mfma_f32_16x16x32_bf16 v[{Y+4*cb}:{Y+4*cb+3}], v[{A}:{A+3}], v[{W+4*n}:{W+4*n+3}], v[{Y+4*cb}:{Y+4*cb+3}]")
            take = {0: 3, 1: 2, 2: 3}.get(cb, 0)
            for i_ in fill[:take]: a(i_)
            fill = fill[take:]
    a("v_lshlrev_b32 v3, 4, v1"); a("v_lshl_add_u32 v3, v2, 5, v3")
    a("s_mul_i32 s21, s20, 2560")
    a(f"v_add_u32 v{VT2}, s21, v3")
    a("s_mov_b32 exec_hi, 0")
    for cb in range(5):
        a(f"ds_write_b128 v{VT2}, v[{Y+4*cb}:{Y+4*cb+3}] offset:{YPART + 512*cb}")
    a("s_mov_b64 exec, -1")
    a("s_waitcnt lgkmcnt(0)")
    stamp(11)
    a("s_barrier")
    stamp(13)
    a("s_cmp_ge_u32 s20, 3")
    a("s_cbranch_scc1 L_end")
    a(f"ds_read_b32 v{VT1}, v{CTs} offset:{O_LAST}")
    a("s_lshl_b32 s21, s20, 10")
    a(f"v_lshl_add_u32 v{VT2}, v0, 4, s21")
    R0 = 64
    for c in range(4):
        a(f"ds_read_b128 v[{R0+4*c}:{R0+4*c+3}], v{VT2} offset:{YPART + 2560*c}")
    a("s_waitcnt lgkmcnt(4)")
    a(f"v_readfirstlane_b32 s22, v{VT1}")
    a("s_cmp_lg_u32 s22, 31")
    a("s_cbranch_scc1 L_pub")
    for c in range(4, 8):
        a(f"ds_read_b128 v[{R0+4*c}:{R0+4*c+3}], v{VT2} offset:{YPART + 2560*c}")
    a(f"v_lshrrev_b32 v{VT2}, 1, v{VT2}")
    a("s_waitcnt lgkmcnt(0)")
    for (x, y) in ((0, 1), (2, 3), (4, 5), (6, 7), (0, 2), (4, 6)):
        a(f"v_pk_add_f32 v[{R0+4*x}:{R0+4*x+1}], v[{R0+4*x}:{R0+4*x+1}], v[{R0+4*y}:{R0+4*y+1}]")
        a(f"v_pk_add_f32 v[{R0+4*x+2}:{R0+4*x+3}], v[{R0+4*x+2}:{R0+4*x+3}], v[{R0+4*y+2}:{R0+4*y+3}]")
    a(f"v_cvt_pk_bf16_f32 v{R0}, v{R0}, v{R0+1}")
    a(f"v_cvt_pk_bf16_f32 v{R0+2}, v{R0+2}, v{R0+3}")
    a(f"v_and_b32 v{R0+1}, 0xffff0000, v{R0}"); a(f"v_lshlrev_b32 v{R0}, 16, v{R0}")
    a(f"v_and_b32 v{R0+3}, 0xffff0000, v{R0+2}"); a(f"v_lshlrev_b32 v{R0+2}, 16, v{R0+2}")
    a(f"v_pk_add_f32 v[{R0}:{R0+1}], v[{R0}:{R0+1}], v[{R0+16}:{R0+17}]")
    a(f"v_pk_add_f32 v[{R0+2}:{R0+3}], v[{R0+2}:{R0+3}], v[{R0+18}:{R0+19}]")
    if perturb:
        for e in range(4): a(f"v_mul_f32 v{R0+e}, {f2u(1.0 + perturb):#x}, v{R0+e}")
    a(f"v_cvt_pk_bf16_f32 v{R0}, v{R0}, v{R0+1}")
    a(f"v_cvt_pk_bf16_f32 v{R0+1}, v{R0+2}, v{R0+3}")
    a(f"buffer_store_dwordx2 v[{R0}:{R0+1}], v{VT2}, s[12:15], 0 offen {outflags}")
    stamp(5)
    a("s_endpgm")
    a.label("L_pub")
    a(f"v_lshrrev_b32 v{VT2}, 1, v{VT2}")
    a("s_waitcnt lgkmcnt(0)")
    for (x, y) in ((0, 1), (2, 3), (0, 2)):
        a(f"v_pk_add_f32 v[{R0+4*x}:{R0+4*x+1}], v[{R0+4*x}:{R0+4*x+1}], v[{R0+4*y}:{R0+4*y+1}]")
        a(f"v_pk_add_f32 v[{R0+4*x+2}:{R0+4*x+3}], v[{R0+4*x+2}:{R0+4*x+3}], v[{R0+4*y+2}:{R0+4*y+3}]")
    a(f"v_cvt_pk_bf16_f32 v{R0}, v{R0}, v{R0+1}")
    a(f"v_cvt_pk_bf16_f32 v{R0+1}, v{R0+2}, v{R0+3}")
    for e in range(2): a(f"v_min_u32 v{R0+e}, -2, v{R0+e}")
    a(f"buffer_store_dwordx2 v[{R0}:{R0+1}], v{VT2}, s[76:79], 0 offen sc1")
    stamp(5)
    a("s_endpgm")

    a.label("L_join")
    a(f"v_mov_b32 v1, {CTL}")
    a("s_waitcnt lgkmcnt(0)")
    a("s_barrier")
    a(f"ds_read_b32 v2, v1 offset:{O_LAST}")
    a("s_waitcnt lgkmcnt(0)")
    a("v_readfirstlane_b32 s21, v2")
    a("s_cmp_lg_u32 s21, 31")
    a("s_cbranch_scc1 L_join3")
    a("v_lshrrev_b32 v1, 4, v0"); a("v_and_b32 v2, 15, v0")
    a(f"v_lshlrev_b32 v3, {int(math.log2(YSTRIDE))}, v1"); a("v_lshl_add_u32 v3, v2, 4, v3")
    a("s_lshl_b32 s22, s19, 3")
    for n in range(2):
        a(f"s_add_u32 s23, s22, {4*n}")
        a("v_add_u32 v4, s23, v1")
        a("v_cmp_eq_u32 vcc, s16, v4")
        a("v_mov_b32 v5, 0x40000000")
        a(f"v_cndmask_b32 v{6+n}, v3, v5, vcc")
    masks(8, "v0", "v4", "v5")
    for r in range(4): a(f"v_and_b32 v{8+r}, 0x3f803f80, v{8+r}")
    a(f"s_mov_b32 s27, 0x4000")
    D = 64
    def g_issue(G):
        for n in range(2):
            a(f"s_add_u32 s23, s22, {4*n}"); a(f"s_lshl_b32 s23, s23, {int(math.log2(YSTRIDE))}")
            for cb in range(5):
                d = G + 4*(5*n + cb)
                a(f"buffer_load_dwordx4 v[{d}:{d+3}], v{6+n}, s[40:43], s23 offen offset:{256*cb} sc1")
    def g_check(G, okl):
        a(f"v_max3_u32 v4, v{G}, v{G+1}, v{G+2}")
        a(f"v_max3_u32 v5, v{G+3}, v{G+4}, v{G+5}")
        for e in range(6, 40, 4):
            a(f"v_max3_u32 v4, v4, v{G+e}, v{G+e+1}")
            if e + 3 < 40: a(f"v_max3_u32 v5, v5, v{G+e+2}, v{G+e+3}")
        a("v_max_u32 v4, v4, v5")
        a("v_cmp_eq_u32 vcc, -1, v4")
        a("s_cmp_eq_u64 vcc, 0")
        a(f"s_cbranch_scc1 {okl}")
    def g_sum(G):
        for n in range(2):
            for cb in range(5):
                d = G + 4*(5*n + cb)
                c = "0" if n == 0 else f"v[{D+4*cb}:{D+4*cb+3}]"
                a(f"v_mfma_f32_16x16x32_bf16 v[{D+4*cb}:{D+4*cb+3}], v[8:11], v[{d}:{d+3}], {c}")
    GA, GB = 16, 96
    if pipepoll:
        g_issue(GA)
        a("s_sleep 4")
        g_issue(GB)
        a.label("L_gather")
        a("s_waitcnt vmcnt(10)")
        g_check(GA, "L_gathA")
        g_issue(GA)
        a("s_waitcnt vmcnt(10)")
        g_check(GB, "L_gathB")
        g_issue(GB)
        a("s_sub_u32 s27, s27, 1")
        a("s_cmp_lg_u32 s27, 0")
        a("s_cbranch_scc1 L_gather")
        a.label("L_gathA")
        stamp(12)
        g_sum(GA)
        a("s_branch L_gathered")
        a.label("L_gathB")
        stamp(12)
        g_sum(GB)
        a.label("L_gathered")
    else:
        a.label("L_gather")
        g_issue(GA)
        a("s_waitcnt vmcnt(0)")
        g_check(GA, "L_gathered")
        a("s_sub_u32 s27, s27, 1")
        a("s_cmp_lg_u32 s27, 0")
        a("s_cbranch_scc1 L_gather")
        a.label("L_gathered")
        stamp(12)
        g_sum(GA)
    a("v_lshlrev_b32 v3, 4, v1"); a("v_lshl_add_u32 v3, v2, 5, v3")
    a("s_add_u32 s21, s19, 4")
    a("s_mul_i32 s21, s21, 2560")
    a("v_add_u32 v3, s21, v3")
    a("s_mov_b32 exec_hi, 0")
    for cb in range(5):
        a(f"ds_write_b128 v3, v[{D+4*cb}:{D+4*cb+3}] offset:{YPART + 512*cb}")
    a("s_mov_b64 exec, -1")
    a.label("L_join3")
    a("s_waitcnt lgkmcnt(0)")
    a("s_barrier")
    a.label("L_end")
    a("s_endpgm")

    lines, nfix = a.finish()
    out = []
    out.append(HEADER.rstrip("\n"))
    out.append("; Override launch geometry by editing the next line (default: block=256,")
    out.append(f"; @launch grid=(256,1,1) block=(512,1,1) lds={LDS_BYTES}")
    out.append('.amdgcn_target "amdgcn-amd-amdhsa--gfx950"')
    out.append(".text"); out.append(f".globl {KN}"); out.append(".p2align 8"); out.append(f".type {KN},@function")
    out += [l if (l.endswith(":") or l.startswith(";")) else "    " + l for l in lines]
    out.append('.section .rodata,"a"'); out.append(".p2align 6"); out.append(f".amdhsa_kernel {KN}")
    out.append("  .amdhsa_next_free_vgpr 256"); out.append("  .amdhsa_next_free_sgpr 102"); out.append("  .amdhsa_accum_offset 256")
    out.append("  .amdhsa_group_segment_fixed_size 0"); out.append("  .amdhsa_kernarg_size 104"); out.append("  .amdhsa_user_sgpr_count 2")
    out.append("  .amdhsa_user_sgpr_kernarg_segment_ptr 1"); out.append("  .amdhsa_system_sgpr_workgroup_id_x 1"); out.append(".end_amdhsa_kernel")
    return "\n".join(out) + "\n", nfix

if __name__ == "__main__":
    kw = eval("dict(%s)" % (sys.argv[2] if len(sys.argv) > 2 else ""))
    s, n = gen(**kw)
    open(sys.argv[1], "w").write(s)
    print("nops inserted:", n, "bytes:", len(s))
```

```python
import sys, math, struct
sys.path.insert(0, "tools")
from asmlib import Asm

KN = "gated_mix__gqa_block_cached__glu_gated_reglu__decode_kernel"

def f2u(x): return struct.unpack("<I", struct.pack("<f", x))[0]

SLOT = 16384; NSLOT = 9
CTL = SLOT * NSLOT
O_LANDED = 0
O_NEXT = 16
O_QCNT = 32
O_QRDY = 36
O_GUCNT = 40
O_LAST = 44
O_MLCNT = 48
O_QPART = 256
O_QBF = O_QPART + 2048
O_GUPART = O_QBF + 256
O_APART = O_GUPART + 2048
O_END = O_APART + 3072
YPART = 0
LDS_BYTES = CTL + O_END
YSTRIDE = 2048

NT = 128
NCONS = 3
C1 = math.log2(math.e) / math.sqrt(128.0)
LOG2E = math.log2(math.e)

HEADER = open("gated_mix__gqa_block_cached__glu_gated_reglu__decode.s.ref").read().split("; Override launch")[0]

def gen(levels=(20, 24, 16), th=(192, -192), period=12, adapt=True, wflags="nt", kvflags="nt", swq=4, swf=3, rot=True, rotf=False, preload=True, arr=4*123, static_red=None, nosent=False, qstag=0, qmask=1, cprio=0, sprio=0, ffnfree=None, pipepoll=True, klast=True, cntshift=2, outflags="", earlyml=True, perturb=None, sentflags="sc1", mapB=False, sched=None, stamps=False, spin_sleep=1):
    a = Asm()
    levels = [tuple(n) if isinstance(n, (tuple, list)) else (n,)*4 for n in levels]
    for lv_ in levels:
        for n in lv_: assert n % 4 == 0 and 12 <= n <= 60
    O_G = 32
    TO = 0x40000
    uid = [0]
    def L(n): uid[0] += 1; return f"L_{n}_{uid[0]}"

    def lds_wait_ge(vaddr, off, sneed, vtmp, stmp, sto, sleep=spin_sleep, signed=True):
        l0 = L("spin"); l1 = L("spun")
        a(f"s_mov_b32 {sto}, {TO}")
        a.label(l0)
        a(f"ds_read_b32 {vtmp}, {vaddr} offset:{off}")
        a("s_waitcnt lgkmcnt(0)")
        a(f"v_readfirstlane_b32 {stmp}, {vtmp}")
        a(f"s_cmp_ge_i32 {stmp}, {sneed}")
        a(f"s_cbranch_scc1 {l1}")
        if sleep: a(f"s_sleep {sleep}")
        a(f"s_sub_u32 {sto}, {sto}, 1")
        a(f"s_cmp_lg_u32 {sto}, 0")
        a(f"s_cbranch_scc1 {l0}")
        a.label(l1)

    def stamp(idx, stmp0=96):
        if not stamps: return
        a(f"s_memrealtime s[{stmp0}:{stmp0+1}]")
        a("s_waitcnt lgkmcnt(0)")
        a(f"v_mov_b32 v252, s{stmp0}")
        a(f"v_mov_b32 v253, {idx*4}")
        a("s_mov_b64 s[98:99], exec")
        a("s_mov_b64 exec, 1")
        a("buffer_store_dword v252, v253, s[92:95], 0 offen")
        a("s_mov_b64 exec, s[98:99]")

    def stamp_s(sidx4, stmp0=96):
        if not stamps: return
        a(f"s_memrealtime s[{stmp0}:{stmp0+1}]")
        a("s_waitcnt lgkmcnt(0)")
        a(f"v_mov_b32 v252, s{stmp0}")
        a(f"v_mov_b32 v253, {sidx4}")
        a("s_mov_b64 s[98:99], exec")
        a("s_mov_b64 exec, 1")
        a("buffer_store_dword v252, v253, s[92:95], 0 offen")
        a("s_mov_b64 exec, s[98:99]")

    def masks(vbase, vlane, vt0, vt1):
        a(f"v_and_b32 {vt0}, 15, {vlane}")
        a(f"v_and_b32 {vt1}, 1, {vlane}")
        a(f"v_sub_u32 {vt1}, 0, {vt1}")
        a(f"v_xor_b32 {vt1}, 0xffff, {vt1}")
        a(f"v_lshrrev_b32 {vt0}, 1, {vt0}")
        for r in range(4):
            a(f"v_cmp_eq_u32 vcc, {r}, {vt0}")
            a(f"v_cndmask_b32 v{vbase+r}, 0, {vt1}, vcc")

    def gather_srd(part=3):
        if part & 1:
            a("s_load_dwordx2 s[40:41], s[0:1], 96")
            a(f"s_mul_i32 s44, s17, {32*YSTRIDE}")
            a(f"s_mov_b32 s42, {32*YSTRIDE}"); a("s_mov_b32 s43, 0x20000")
        if part & 2:
            a("s_waitcnt lgkmcnt(0)")
            a("s_add_u32 s40, s40, s44"); a("s_addc_u32 s41, s41, 0")

    a.label(KN)
    a("s_cmp_ge_u32 s2, 256")
    a("s_cbranch_scc1 L_end")
    a("s_load_dwordx4 s[4:7], s[0:1], 8")
    a("v_lshrrev_b32 v1, 6, v0")
    a("v_and_b32 v0, 63, v0")
    a("s_and_b32 s16, s2, 7")
    a("s_lshl_b32 s16, s16, 2")
    a("s_bfe_u32 s3, s2, 0x20006" if mapB else "s_bfe_u32 s3, s2, 0x20003")
    a("v_readfirstlane_b32 s19, v1")
    a("s_add_u32 s16, s16, s3")
    a("s_bfe_u32 s17, s2, 0x30003" if mapB else "s_lshr_b32 s17, s2, 5")
    a("s_lshl_b32 s18, s17, 5")
    a("s_add_u32 s18, s18, s16")
    if stamps:
        a("s_load_dwordx2 s[92:93], s[0:1], 96")
        a("s_waitcnt lgkmcnt(0)")
        a("s_lshl_b32 s94, s2, 8")
        a("s_add_u32 s92, s92, s94"); a("s_addc_u32 s93, s93, 0")
        a("s_add_u32 s92, s92, 0x400000"); a("s_addc_u32 s93, s93, 0")
        a("s_mov_b32 s94, 256"); a("s_mov_b32 s95, 0x20000")
    a("s_cmp_lg_u32 s19, 0")
    a("s_cbranch_scc1 L_notloader")

    a.c("==== loader wave: K/V stream, LDS-DMA ring")
    a("s_setprio 3")
    if stamps: a("s_mov_b32 s91, 0")
    stamp(0)
    a("v_lshrrev_b32 v8, 4, v0")
    a("v_and_b32 v9, 15, v0")
    for m in range(4):
        a(f"v_add_u32 v10, {4*m}, v8")
        a("v_xor_b32 v10, v10, v9")
        a("v_lshlrev_b32 v10, 4, v10")
        a(f"v_lshl_add_u32 v{2+m}, v8, 8, v10")
    a("v_lshlrev_b32 v6, 4, v0")
    a(f"v_mov_b32 v7, {CTL}")
    a("s_lshr_b32 s20, s18, 12")
    a("s_lshl_b32 s21, s18, 20")
    a("s_mov_b32 s10, 0x100000"); a("s_mov_b32 s11, 0x20000")
    a("s_mov_b32 s14, 0x100000"); a("s_mov_b32 s15, 0x20000")
    a("s_waitcnt lgkmcnt(0)")
    a("s_add_u32 s8, s4, s21"); a("s_addc_u32 s9, s5, s20")
    a("s_add_u32 s12, s6, s21"); a("s_addc_u32 s13, s7, s20")
    def group(grp, sgo, sslot):
        srd = "s[8:11]" if grp < 2 else "s[12:15]"
        a(f"s_add_u32 m0, {sslot}, {grp*4096}")
        a(f"s_add_u32 s24, {sgo}, {(grp&1)*4096}")
        for m in range(4):
            vo = f"v{2+m}" if grp < 2 else "v6"
            a(f"buffer_load_dwordx4 {vo}, {srd}, s24 offen offset:{m*1024} {kvflags} lds")
    a("s_mov_b32 s22, 0"); a("s_mov_b32 s23, 0")
    for grp in range(4): group(grp, "s22", "s23")
    gather_srd(1)
    a("s_barrier")
    a("ds_read_b128 v[12:15], v7 offset:%d" % O_NEXT)
    gather_srd(2)
    a("s_mov_b32 s25, 1")
    a("s_mov_b32 s22, 8192"); a(f"s_mov_b32 s23, {SLOT}")
    a.label("L_ld_loop")
    a("s_waitcnt lgkmcnt(0)")
    a("v_min3_u32 v9, v12, v13, v14")
    a("v_readfirstlane_b32 s30, v15")
    a("v_readfirstlane_b32 s26, v9")
    a(f"s_add_u32 s26, s26, {NSLOT-1}")
    a("s_cmp_ge_u32 s26, s25")
    a(f"s_cbranch_scc1 L_ld_free")
    a(f"s_mov_b32 s27, {TO}")
    if stamps: a("s_add_u32 s91, s91, 1")
    a.label(f"L_ld_spin")
    a("s_sleep 1")
    a("ds_read_b128 v[12:15], v7 offset:%d" % O_NEXT)
    a("s_waitcnt lgkmcnt(0)")
    a("v_min3_u32 v9, v12, v13, v14")
    a("v_readfirstlane_b32 s26, v9")
    a(f"s_add_u32 s26, s26, {NSLOT-1}")
    a("s_cmp_ge_u32 s26, s25")
    a(f"s_cbranch_scc1 L_ld_free")
    a("s_sub_u32 s27, s27, 1")
    a("s_cmp_lg_u32 s27, 0")
    a(f"s_cbranch_scc1 L_ld_spin")
    a.label(f"L_ld_free")
    if stamps:
        a("s_and_b32 s90, s25, 7"); a("s_cmp_lg_u32 s90, 0"); a(f"s_cbranch_scc1 L_ld_nost")
        a("s_lshr_b32 s90, s25, 3"); a("s_add_u32 s90, s90, 16"); a("s_lshl_b32 s90, s90, 2")
        stamp_s("s90")
        a.label(f"L_ld_nost")
    a("s_lshl_b32 s28, s25, 2")
    lv = list(levels) if (adapt or sched) else [levels[0]]
    if sched:
        a("s_mov_b32 s30, 0")
        for (t0_, lvl) in sched:
            a(f"s_cmp_ge_u32 s25, {t0_}")
            a(f"s_cselect_b32 s30, {lvl}, s30")
    for k in range(1, len(lv)):
        a(f"s_cmp_eq_u32 s30, {k}")
        a(f"s_cbranch_scc1 L_ld_body{k}")
    for k, Ns in enumerate(lv):
        if k: a.label(f"L_ld_body{k}")
        for grp in range(4):
            N = Ns[grp]; NG = N // 4
            a(f"s_waitcnt vmcnt({N-4})")
            group(grp, "s22", "s23")
            a(f"s_add_i32 s29, s28, {grp - NG + 1}")
            a("v_mov_b32 v8, s29")
            a(f"ds_write_b32 v7, v8 offset:{O_LANDED}")
            if grp == 2: a("ds_read_b128 v[12:15], v7 offset:%d" % O_NEXT)
        if k != len(lv) - 1: a("s_branch L_ld_next")
    a.label("L_ld_next")
    a("s_add_u32 s22, s22, 8192")
    a(f"s_add_u32 s23, s23, {SLOT}")
    a(f"s_cmp_ge_u32 s23, {SLOT*NSLOT}")
    a("s_cselect_b32 s23, 0, s23")
    a("s_add_u32 s25, s25, 1")
    a(f"s_cmp_lt_u32 s25, {NT-2 if klast else NT}")
    a(f"s_cbranch_scc1 L_ld_loop")
    if klast:
        a(f"s_mov_b32 s27, {TO}")
        a.label("L_ld_spin2")
        a("ds_read_b128 v[12:15], v7 offset:%d" % O_NEXT)
        a("s_waitcnt lgkmcnt(0)")
        a("v_min3_u32 v9, v12, v13, v14")
        a("v_readfirstlane_b32 s26, v9")
        a(f"s_cmp_ge_u32 s26, {NT - NSLOT}")
        a("s_cbranch_scc1 L_ld_free2")
        a("s_sub_u32 s27, s27, 1")
        a("s_cmp_lg_u32 s27, 0")
        a("s_cbranch_scc1 L_ld_spin2")
        a.label("L_ld_free2")
        a(f"s_add_u32 s32, s22, 8192")
        a(f"s_add_u32 s33, s23, {SLOT}")
        a(f"s_cmp_ge_u32 s33, {SLOT*NSLOT}")
        a("s_cselect_b32 s33, 0, s33")
        NL = lv[-1][0]; NGl = NL // 4
        order = [(0, "s22", "s23"), (1, "s22", "s23"), (0, "s32", "s33"), (1, "s32", "s33"), (2, "s22", "s23"), (3, "s22", "s23"), (2, "s32", "s33"), (3, "s32", "s33")]
        for n, (grp, so, sl) in enumerate(order):
            a(f"s_waitcnt vmcnt({NL-4})")
            group(grp, so, sl)
            a(f"v_mov_b32 v8, {4*(NT-2) + n - NGl + 1}")
            a(f"ds_write_b32 v7, v8 offset:{O_LANDED}")
    NG = max(max(x) for x in lv) // 4
    for k in range(NG):
        a(f"s_waitcnt vmcnt({4*(NG-1-k)})")
        a(f"v_mov_b32 v8, {4*NT - NG + 1 + k}")
        a(f"ds_write_b32 v7, v8 offset:{O_LANDED}")
    stamp(1)
    if stamps:
        a("v_mov_b32 v252, s91"); a("v_mov_b32 v253, 60"); a("s_mov_b64 exec, 1")
        a("buffer_store_dword v252, v253, s[92:95], 0 offen"); a("s_mov_b64 exec, -1")
    a("s_setprio 0")
    a("s_branch L_join")

    a.label("L_notloader")
    a("s_cmp_ge_u32 s19, 4")
    a("s_cbranch_scc1 L_side")

    a.c("==== consumer waves")
    Q = 16; KD = 32; VD = 64; AO = 96; S = 128; O = 136; MK = 140; KA = 144; KC = 148
    VA, VC, MS, LS, AL, T0, T1, CT = 152, 153, 154, 155, 156, 157, 158, 159
    a("s_sub_u32 s20, s19, 1")
    if cprio: a(f"s_setprio {cprio}")
    a(f"v_mov_b32 v{CT}, {CTL}")
    masks(MK, "v0", f"v{T0}", f"v{T1}")
    a(f"v_lshrrev_b32 v1, 4, v0")
    a(f"v_and_b32 v2, 15, v0")
    for r in range(4):
        a(f"v_add_u32 v3, {4*r}, v1")
        a("v_xor_b32 v3, v3, v2")
        a("v_lshlrev_b32 v3, 4, v3")
        a(f"v_lshl_add_u32 v{KA+r}, v2, 8, v3")
    a("v_lshlrev_b32 v3, 4, v2")
    a(f"v_lshl_add_u32 v{VA}, v1, 10, v3")
    a(f"v_lshl_add_u32 v4, v1, 4, v{CT}")
    a(f"v_mov_b32 v{MS}, 0xff7fffff")
    a(f"v_mov_b32 v{LS}, 0")
    for r in range(4): a(f"v_mov_b32 v{O+r}, 0")
    a(f"s_mov_b32 s21, {f2u(C1):#x}")
    gather_srd()
    if adapt:
        a("s_load_dwordx2 s[32:33], s[0:1], 88")
        a("s_mul_i32 s31, s2, 171"); a("s_lshr_b32 s31, s31, 11"); a("s_mul_i32 s31, s31, 12"); a("s_sub_u32 s31, s2, s31")
        a("s_mov_b32 s34, 256"); a("s_mov_b32 s35, 0x20000")
        a("s_waitcnt lgkmcnt(0)")
    a("s_barrier")
    a("s_mov_b32 s22, s20")
    a("s_lshl_b32 s23, s20, 14")
    a("s_mov_b32 s28, -1")
    def c_addr():
        a("s_lshl_b32 s24, s22, 2")
        for r in range(4): a(f"v_add_u32 v{KC+r}, s23, v{KA+r}")
        a(f"v_add_u32 v{VC}, s23, v{VA}")
    def c_wait(tag):
        a("s_cmp_ge_i32 s28, s24")
        a(f"s_cbranch_scc1 L_c_{tag}")
        lds_wait_ge(f"v{CT}", O_LANDED, "s24", f"v{T0}", "s28", "s27")
        a.label(f"L_c_{tag}")
    def c_kreads(KD=KD):
        for u in range(2):
            for r in range(4):
                d = KD + (u*4+r)*4
                a(f"ds_read_b128 v[{d}:{d+3}], v{KC+r} offset:{u*4096}")
    def c_qk(waits, KD=KD):
        for u in range(2):
            for r in range(4):
                d = KD + (u*4+r)*4
                if waits: a(f"s_waitcnt lgkmcnt({7-(u*4+r)})")
                c = "0" if r == 0 else f"v[{S+4*u}:{S+4*u+3}]"
                a(f"v_mfma_f32_16x16x32_bf16 v[{S+4*u}:{S+4*u+3}], v[{d}:{d+3}], v[{Q+4*r}:{Q+4*r+3}], {c}")
    def c_softmax():
        a(f"v_max3_f32 v{T0}, v{S}, v{S+1}, v{S+2}")
        a(f"v_max3_f32 v{T1}, v{S+3}, v{S+4}, v{S+5}")
        a(f"v_max3_f32 v{T0}, v{T0}, v{S+6}, v{S+7}")
        a(f"v_max_f32 v{T0}, v{T0}, v{T1}")
        a(f"v_mul_f32 v{T0}, s21, v{T0}")
        a(f"v_max_f32 v{T0}, v{T0}, v{MS}")
        a(f"v_max_f32_dpp v{T0}, v{T0}, v{T0} row_bcast:15 row_mask:0xa bank_mask:0xf")
        a(f"v_max_f32_dpp v{T0}, v{T0}, v{T0} row_bcast:31 row_mask:0xc bank_mask:0xf")
        a(f"v_readlane_b32 s29, v{T0}, 63")
        a(f"v_subrev_f32 v{AL}, s29, v{MS}")
        a(f"v_mov_b32 v{MS}, s29")
        a(f"v_exp_f32 v{AL}, v{AL}")
        for k in range(8): a(f"v_fma_f32 v{S+k}, v{S+k}, s21, -v{MS}")
        for k in range(8): a(f"v_exp_f32 v{S+k}, v{S+k}")
        a(f"v_mul_f32 v{LS}, v{LS}, v{AL}")
        for r in range(4): a(f"v_mul_f32 v{O+r}, v{O+r}, v{AL}")
        for k in range(8):
            a(f"v_cvt_pk_bf16_f32 v{T1}, v{S+k}, v{S+k}")
            a(f"v_add_f32 v{LS}, v{LS}, v{S+k}")
            for r in range(4): a(f"v_and_b32 v{AO+4*k+r}, v{T1}, v{MK+r}")
    def c_vreads(VD=VD):
        for k in range(8):
            u, r = k >> 2, k & 3
            d = VD + 4*k
            a(f"ds_read_b128 v[{d}:{d+3}], v{VC} offset:{8192 + u*4096 + r*256}")
    def c_advance():
        a("s_add_u32 s22, s22, %d" % NCONS)
        a(f"v_mov_b32 v{T0}, s22")
        a("s_lshl_b32 s30, s20, 2")
        a(f"v_add_u32 v{T1}, s30, v{CT}")
        a(f"s_add_u32 s23, s23, {NCONS*SLOT}")
        a(f"s_sub_u32 s30, s23, {NSLOT*SLOT}")
        a(f"s_cmp_ge_u32 s23, {NSLOT*SLOT}")
        a("s_cselect_b32 s23, s30, s23")
    def c_free():
        a(f"ds_write_b32 v{T1}, v{T0} offset:{O_NEXT}")
    def c_pv(waits, VD=VD):
        for k in range(8):
            d = VD + 4*k
            if waits:
                a(f"s_waitcnt lgkmcnt({7-k})")
                if k == 7: c_free()
            a(f"v_mfma_f32_16x16x32_bf16 v[{O}:{O+3}], v[{AO+4*k}:{AO+4*k+3}], v[{d}:{d+3}], v[{O}:{O+3}]")
    def c_checkpoint(tag):
        assert period == 12
        a(f"s_sub_u32 s30, s22, {NCONS}")
        a("s_cmp_lg_u32 s30, s31")
        a(f"s_cbranch_scc1 L_c_nocp{tag}")
        a(f"s_add_u32 s31, s31, {period}")
        a(f"v_mov_b32 v{T0}, 1"); a(f"v_mov_b32 v{T1}, {O_G}")
        a("s_mov_b64 exec, 1")
        a(f"buffer_atomic_add v{T0}, v{T1}, s[32:35], 0 offen sc0")
        a("s_waitcnt vmcnt(0)")
        a("s_mov_b64 exec, -1")
        a(f"v_readfirstlane_b32 s36, v{T0}")
        a("s_add_u32 s37, s30, 1")
        a("s_lshl_b32 s37, s37, 8")
        a(f"s_mul_i32 s36, s36, {period}")
        a("s_sub_i32 s36, s36, s37")
        a("s_mov_b32 s37, 0")
        for k, t in enumerate(th):
            a(f"s_cmp_gt_i32 s36, {t}" if t > 0 else f"s_cmp_lt_i32 s36, {t}")
            a(f"s_cselect_b32 s37, {k+1}, s37")
        a(f"v_mov_b32 v{T0}, s37")
        a(f"ds_write_b32 v{CT}, v{T0} offset:{O_NEXT + 12}")
        if stamps:
            a("s_lshr_b32 s90, s31, 2"); a("s_and_b32 s90, s90, 0xfc"); a("s_sub_u32 s90, s31, 12")
            a("s_mul_i32 s90, s90, 171"); a("s_lshr_b32 s90, s90, 11"); a("s_add_u32 s90, s90, 40"); a("s_lshl_b32 s90, s90, 2")
            a("v_mov_b32 v252, s36"); a("v_mov_b32 v253, s90"); a("s_mov_b64 exec, 1")
            a("buffer_store_dword v252, v253, s[92:95], 0 offen"); a("s_mov_b64 exec, -1")
        a.label(f"L_c_nocp{tag}")
    def c_ml():
        a(f"v_add_f32_dpp v{LS}, v{LS}, v{LS} row_bcast:15 row_mask:0xa bank_mask:0xf")
        a(f"v_add_f32_dpp v{LS}, v{LS}, v{LS} row_bcast:31 row_mask:0xc bank_mask:0xf")
        a(f"v_readlane_b32 s29, v{LS}, 63")
        a("s_lshl_b32 s30, s20, 10")
        a("v_lshrrev_b32 v1, 4, v0"); a("v_and_b32 v2, 15, v0")
        a("v_lshlrev_b32 v1, 4, v1"); a("v_lshl_add_u32 v1, v2, 5, v1")
        a(f"v_add_u32 v1, s30, v1"); a(f"v_add_u32 v1, v1, v{CT}")
        a(f"v_add_u32 v2, s30, v{CT}")
        a(f"v_mov_b32 v{MS+1}, s29")
        a(f"v_mov_b32 v3, 1")
        a("s_mov_b64 exec, 1")
        a(f"ds_write_b64 v2, v[{MS}:{MS+1}] offset:{O_APART + 512}")
        a("s_waitcnt lgkmcnt(0)")
        a(f"ds_add_u32 v{CT}, v3 offset:{O_MLCNT}")
        a("s_mov_b64 exec, -1")
    PK = [(KD, VD), (160, 192)][:int(preload)]
    for n, (kd, vd) in enumerate(PK):
        c_addr()
        a("s_add_u32 s24, s24, 4")
        c_wait(f"first{n}")
        c_kreads(kd)
        a("s_waitcnt lgkmcnt(0)")
        c_vreads(vd)
        c_advance()
        a("s_waitcnt lgkmcnt(0)")
        c_free()
    lds_wait_ge(f"v{CT}", O_QRDY, "1", f"v{T0}", "s26", "s27")
    stamp(9)
    for r in range(4):
        a(f"ds_read_b128 v[{Q+4*r}:{Q+4*r+3}], v4 offset:{O_QBF + 64*r}")
    if PK: a("s_waitcnt lgkmcnt(0)")
    for n, (kd, vd) in enumerate(PK):
        c_qk(False, kd)
        c_softmax()
        c_pv(False, vd)
        assert not adapt or len(PK) == 1
        if adapt: c_checkpoint("b")
    a.label("L_c_loop")
    c_addr()
    a("s_add_u32 s24, s24, 2")
    if klast:
        a(f"s_cmp_eq_u32 s22, {NT-1}"); a("s_cselect_b32 s30, 2, 0"); a("s_sub_u32 s24, s24, s30")
    c_wait("kok")
    c_kreads()
    c_qk(True)
    a("s_lshl_b32 s24, s22, 2"); a("s_add_u32 s24, s24, 4")
    if klast:
        a(f"s_cmp_eq_u32 s22, {NT-2}"); a("s_cselect_b32 s30, 2, 0"); a("s_add_u32 s24, s24, s30")
    c_softmax()
    if earlyml:
        a(f"s_add_u32 s30, s22, {NCONS}")
        a(f"s_cmp_lt_u32 s30, {NT}")
        a("s_cbranch_scc1 L_c_notlast")
        c_ml()
        lds_wait_ge(f"v{CT}", O_LANDED, "s24", f"v{T0}", "s28", "s27", sleep=0)
        a.label("L_c_notlast")
    c_wait("vok")
    c_vreads()
    c_advance()
    c_pv(True)
    if adapt: c_checkpoint("a")
    a(f"s_cmp_lt_u32 s22, {NT}")
    a("s_cbranch_scc1 L_c_loop")
    if not earlyml: c_ml()
    a("s_mov_b32 exec_hi, 0")
    a(f"ds_write_b128 v1, v[{O}:{O+3}] offset:{O_APART}")
    a("s_mov_b64 exec, -1")
    stamp(2)
    a("s_branch L_join")

    a.label("L_side")
    a.c("==== side waves: q projection, gate, FFN, output projection")
    MKs = 4; A0 = 8; A1 = 52; Y = 12; X = 32; QA = 56; W = 64
    VAD = 60; VO = 62; VT0, VT1, VT2, VT3 = 224, 225, 226, 227; CTs = 228; VG = 229; VG1 = 230
    a("s_sub_u32 s20, s19, 4")
    a("s_mov_b32 s70, 256"); a("s_mov_b32 s71, 0x20000")
    a("s_load_dwordx2 s[44:45], s[0:1], 0")
    a("s_load_dwordx4 s[24:27], s[0:1], 24")
    a("s_load_dwordx4 s[28:31], s[0:1], 48")
    a("s_load_dwordx4 s[32:35], s[0:1], 64")
    a(f"v_mov_b32 v{CTs}, {CTL}")
    a("v_lshrrev_b32 v1, 4, v0")
    a("v_and_b32 v2, 15, v0")
    a("s_cmp_lg_u32 s20, 0")
    a("s_cbranch_scc1 L_s_noinit")
    a("v_mov_b32 v8, 0"); a("v_mov_b32 v9, 0"); a("v_mov_b32 v10, 0"); a("v_mov_b32 v11, 0")
    a(f"ds_write_b128 v{CTs}, v[8:11] offset:0")
    a(f"ds_write_b128 v{CTs}, v[8:11] offset:32")
    a(f"ds_write_b128 v{CTs}, v[8:11] offset:48")
    a("v_mov_b32 v9, 1"); a("v_mov_b32 v10, 2"); a("v_mov_b32 v11, 0")
    a(f"ds_write_b128 v{CTs}, v[8:11] offset:{O_NEXT}")
    a.label("L_s_noinit")
    a("v_lshlrev_b32 v3, 3, v1")
    a(f"v_lshlrev_b32 v{VT0}, 15, v1")
    a(f"v_lshl_add_u32 v{VT0}, v2, 4, v{VT0}")
    if rot: a("s_lshl_b32 s46, s17, 2"); a("s_add_u32 s46, s46, s20")
    else: a("s_mov_b32 s46, s20")
    for st in range(10):
        a(f"s_add_u32 s21, s46, {4*st}")
        a("s_sub_u32 s22, s21, 40")
        a("s_cmp_ge_u32 s21, 40")
        a(f"s_cselect_b32 s{50+st}, s22, s21")
    a("s_waitcnt lgkmcnt(0)")
    a("s_mul_i32 s21, s17, 1280")
    a("s_add_u32 s4, s44, s21"); a("s_addc_u32 s5, s45, 0"); a("s_mov_b32 s6, 1280"); a("s_mov_b32 s7, 0x20000")
    a("s_lshl_b32 s21, s16, 8")
    a("s_add_u32 s8, s24, s21"); a("s_addc_u32 s9, s25, 0")
    a(f"s_sub_u32 s10, {640*8192}, s21"); a("s_mov_b32 s11, 0x20000")
    for k in range(10):
        a(f"s_lshl_b32 s21, s{50+k}, 5")
        a(f"buffer_load_dwordx2 v[{X+2*k}:{X+2*k+1}], v3, s[4:7], s21 offen")
    def wq_issue(n):
        k, r = n >> 2, n & 3
        a(f"s_lshl_b32 s21, s{50+k}, 17")
        if r: a(f"s_add_u32 s21, s21, {r*8192}")
        a(f"buffer_load_dwordx4 v[{W+4*n}:{W+4*n+3}], v{VT0}, s[8:11], s21 offen {wflags}")
    if qstag:
        a("s_barrier")
        a(f"s_and_b32 s21, s17, {qmask}")
        a("s_cmp_eq_u32 s21, 0")
        a("s_cbranch_scc1 L_s_qgo")
        lds_wait_ge(f"v{CTs}", O_LANDED, str(qstag), f"v{VT1}", "s43", "s42", sleep=2)
        a.label("L_s_qgo")
        for n in range(swq): wq_issue(n)
        stamp(6)
    else:
        for n in range(swq): wq_issue(n)
        stamp(6)
        a("s_barrier")
    masks(MKs, "v0", f"v{VT1}", f"v{VT2}")
    a("s_mov_b32 s36, 0x01000100"); a("s_mov_b32 s37, 0x03020302")
    ns = 1 if stamps else 0
    a(f"s_waitcnt vmcnt({swq + ns})")
    stamp(7)
    def gemv_steps(nblk, acc, first_zero, waitfn, postfn=None):
        for k in range(nblk):
            for r in range(4):
                n = 4*k + r
                A = A0 if n % 2 == 0 else A1
                xs = X + 2*k + (r >> 1)
                a(f"v_perm_b32 v{VT1}, v{xs}, v{xs}, s{36 + (r & 1)}")
                for q in range(4): a(f"v_and_b32 v{A+q}, v{VT1}, v{MKs+q}")
                waitfn(n)
                c = "0" if (n == 0 and first_zero) else f"v[{acc}:{acc+3}]"
                a(f"v_mfma_f32_16x16x32_bf16 v[{acc}:{acc+3}], v[{A}:{A+3}], v[{W+4*n}:{W+4*n+3}], {c}")
    def window(issue, total, win):
        def f(n):
            a(f"s_waitcnt vmcnt({min(win, total - n) - 1})")
            if n + win < total: issue(n + win)
        return f
    gemv_steps(10, QA, True, window(wq_issue, 40, swq))
    stamp(8)
    a("v_lshlrev_b32 v3, 4, v1"); a("v_lshl_add_u32 v3, v2, 5, v3")
    a("s_lshl_b32 s21, s20, 9")
    a(f"v_add3_u32 v{VT2}, v3, s21, v{CTs}")
    a("s_mov_b32 exec_hi, 0")
    a(f"ds_write_b128 v{VT2}, v[{QA}:{QA+3}] offset:{O_QPART}")
    a("s_mov_b64 exec, -1")
    a(f"v_mov_b32 v{VT1}, 1")
    a("s_waitcnt lgkmcnt(0)")
    a("s_mov_b64 exec, 1")
    a(f"ds_add_rtn_u32 v{VT1}, v{CTs}, v{VT1} offset:{O_QCNT}")
    a("s_mov_b64 exec, -1")
    a("s_waitcnt lgkmcnt(0)")
    a(f"v_readfirstlane_b32 s21, v{VT1}")
    a("s_cmp_lg_u32 s21, 3")
    a("s_cbranch_scc1 L_s_qdone")
    a(f"v_lshl_add_u32 v{VT2}, v0, 3, v{CTs}")
    for c in range(4):
        a(f"ds_read_b64 v[{W+2*c}:{W+2*c+1}], v{VT2} offset:{O_QPART + 512*c}")
    a("s_waitcnt lgkmcnt(0)")
    a(f"v_add_f32 v{W}, v{W}, v{W+2}"); a(f"v_add_f32 v{W+1}, v{W+1}, v{W+3}")
    a(f"v_add_f32 v{W+4}, v{W+4}, v{W+6}"); a(f"v_add_f32 v{W+5}, v{W+5}, v{W+7}")
    a(f"v_add_f32 v{W}, v{W}, v{W+4}"); a(f"v_add_f32 v{W+1}, v{W+1}, v{W+5}")
    a(f"v_cvt_pk_bf16_f32 v{W}, v{W}, v{W+1}")
    a(f"v_lshl_add_u32 v{VT2}, v0, 2, v{CTs}")
    a(f"ds_write_b32 v{VT2}, v{W} offset:{O_QBF}")
    a(f"v_mov_b32 v{VT1}, 1")
    a("s_waitcnt lgkmcnt(0)")
    a(f"ds_write_b32 v{CTs}, v{VT1} offset:{O_QRDY}")
    a.label("L_s_qdone")
    stamp(3)
    a("s_cmp_lg_u32 s20, 0")
    a("s_cbranch_scc1 L_s_nosent")
    a("s_load_dwordx2 s[64:65], s[0:1], 96")
    a("s_load_dwordx2 s[68:69], s[0:1], 88")
    a("v_lshlrev_b32 v3, 4, v0")
    for e in range(4): a(f"v_mov_b32 v{W+e}, -1")
    a(f"s_mul_i32 s21, s18, {YSTRIDE}")
    a("s_mov_b32 s66, 1280"); a("s_mov_b32 s67, 0x20000")
    a("s_waitcnt lgkmcnt(0)")
    a("s_add_u32 s64, s64, s21"); a("s_addc_u32 s65, s65, 0")
    for q in range(2):
        if not nosent: a(f"buffer_store_dwordx4 v[{W}:{W+3}], v3, s[64:67], 0 offen offset:{1024*q} {sentflags}")
    a("s_waitcnt vmcnt(0)")
    a.label("L_s_nosent")
    a("s_mov_b32 s8, s34"); a("s_mov_b32 s9, s35"); a("s_mov_b32 s10, 1280"); a("s_mov_b32 s11, 0x20000")
    a("v_lshlrev_b32 v3, 4, v0")
    a(f"buffer_load_dwordx4 v[{W}:{W+3}], v3, s[4:7], 0 offen")
    a(f"buffer_load_dwordx4 v[{W+4}:{W+7}], v3, s[4:7], 0 offen offset:1024")
    a(f"buffer_load_dwordx4 v[{W+8}:{W+11}], v3, s[8:11], 0 offen")
    a(f"buffer_load_dwordx4 v[{W+12}:{W+15}], v3, s[8:11], 0 offen offset:1024")
    a(f"v_mov_b32 v{VG}, 0")
    a("s_waitcnt vmcnt(0)")
    for k in range(8):
        xs, wsr = W + k, W + 8 + k
        a(f"v_lshlrev_b32 v{VT0}, 16, v{xs}"); a(f"v_lshlrev_b32 v{VT1}, 16, v{wsr}")
        a(f"v_and_b32 v{VT2}, 0xffff0000, v{xs}"); a(f"v_and_b32 v{VT3}, 0xffff0000, v{wsr}")
        a(f"v_mul_f32 v{VT0}, v{VT0}, v{VT1}"); a(f"v_mul_f32 v{VT2}, v{VT2}, v{VT3}")
        a(f"v_cvt_pk_bf16_f32 v{VT0}, v{VT0}, v{VT2}")
        a(f"v_lshlrev_b32 v{VT1}, 16, v{VT0}"); a(f"v_and_b32 v{VT2}, 0xffff0000, v{VT0}")
        a(f"v_add_f32 v{VG}, v{VG}, v{VT1}"); a(f"v_add_f32 v{VG}, v{VG}, v{VT2}")
    for sh in (1, 2, 4, 8):
        a(f"v_add_f32_dpp v{VG}, v{VG}, v{VG} row_ror:{sh} row_mask:0xf bank_mask:0xf")
    a(f"v_add_f32_dpp v{VG}, v{VG}, v{VG} row_bcast:15 row_mask:0xa bank_mask:0xf")
    a(f"v_add_f32_dpp v{VG}, v{VG}, v{VG} row_bcast:31 row_mask:0xc bank_mask:0xf")
    a(f"v_readlane_b32 s21, v{VG}, 63")
    a(f"v_mov_b32 v{VG}, s21")
    a(f"v_cvt_pk_bf16_f32 v{VG}, v{VG}, v{VG}")
    a(f"v_and_b32 v{VG}, 0xffff0000, v{VG}")
    a(f"v_mul_f32 v{VG}, {f2u(-LOG2E):#x}, v{VG}")
    a(f"v_exp_f32 v{VG}, v{VG}")
    a(f"v_add_f32 v{VG}, 1.0, v{VG}")
    a(f"v_rcp_f32 v{VG}, v{VG}")
    a(f"v_cvt_pk_bf16_f32 v{VG}, v{VG}, v{VG}")
    a(f"v_and_b32 v{VG}, 0xffff0000, v{VG}")
    a(f"v_sub_f32 v{VG1}, 1.0, v{VG}")
    a(f"v_cvt_pk_bf16_f32 v{VG1}, v{VG1}, v{VG1}")
    a(f"v_and_b32 v{VG1}, 0xffff0000, v{VG1}")
    for r in range(20): a(f"v_mov_b32 v{Y+r}, 0")
    free = sorted(ffnfree) if ffnfree else [27, 28, 29, 30, 31]
    assert len(free) == 5
    a("s_mov_b32 s62, s16")
    for f_ in free:
        a(f"s_cmp_gt_u32 s16, {f_}"); a("s_cselect_b32 s21, 1, 0"); a("s_sub_u32 s62, s62, s21")
    for f_ in free:
        a(f"s_cmp_eq_u32 s16, {f_}"); a("s_cselect_b32 s62, 27, s62")
    a("s_cmp_ge_u32 s62, 27")
    a("s_cbranch_scc1 L_s_noffn")
    if rot and not rotf:
        a("v_lshrrev_b32 v3, 4, v0"); a("v_lshlrev_b32 v3, 3, v3")
        for k in range(10):
            a(f"s_add_u32 s{50+k}, s20, {4*k}")
            a(f"s_lshl_b32 s21, s{50+k}, 5")
            a(f"buffer_load_dwordx2 v[{X+2*k}:{X+2*k+1}], v3, s[4:7], s21 offen")
        a("s_waitcnt vmcnt(0)")
    a("v_cmp_gt_u32 vcc, 8, v2")
    a(f"v_mov_b32 v{VT0}, s30"); a(f"v_mov_b32 v{VT1}, s28")
    a(f"v_cndmask_b32 v{VAD}, v{VT0}, v{VT1}, vcc")
    a(f"v_mov_b32 v{VT0}, s31"); a(f"v_mov_b32 v{VT1}, s29")
    a(f"v_cndmask_b32 v{VAD+1}, v{VT0}, v{VT1}, vcc")
    a(f"s_movk_i32 s21, {4*3456}")
    a(f"v_mul_lo_u32 v{VT0}, v1, s21")
    a(f"v_and_b32 v{VT1}, 7, v2")
    a(f"v_lshl_add_u32 v{VT0}, v{VT1}, 4, v{VT0}")
    a("s_lshl_b32 s21, s62, 7")
    a(f"v_add_u32 v{VT0}, s21, v{VT0}")
    a(f"v_mov_b32 v{VT1}, 0")
    VB = 250
    a(f"v_lshl_add_u64 v[{VB}:{VB+1}], v[{VT0}:{VT1}], 0, v[{VAD}:{VAD+1}]")
    a("s_mov_b32 s38, 6912"); a("s_mov_b32 s39, 0"); a("s_mov_b32 s41, 0")
    def gu_issue(n):
        k, r = n >> 2, n & 3
        if r == 0:
            a(f"s_mul_i32 s40, s{50+k}, {16*3456}")
            a(f"v_lshl_add_u64 v[{VAD}:{VAD+1}], v[{VB}:{VB+1}], 0, s[40:41]")
        a(f"global_load_dwordx4 v[{W+4*n}:{W+4*n+3}], v[{VAD}:{VAD+1}], off offset:{(r&1)*3456} {wflags}")
        if r == 1: a(f"v_lshl_add_u64 v[{VAD}:{VAD+1}], v[{VAD}:{VAD+1}], 0, s[38:39]")
    for n in range(swf): gu_issue(n)
    gemv_steps(10, QA, True, window(gu_issue, 40, swf))
    a("v_lshlrev_b32 v3, 4, v1"); a("v_lshl_add_u32 v3, v2, 5, v3")
    a("s_lshl_b32 s21, s20, 9")
    a(f"v_add3_u32 v{VT2}, v3, s21, v{CTs}")
    a("s_mov_b32 exec_hi, 0")
    a(f"ds_write_b128 v{VT2}, v[{QA}:{QA+3}] offset:{O_GUPART}")
    a("s_mov_b64 exec, -1")
    a(f"v_mov_b32 v{VT1}, 1")
    a("s_waitcnt lgkmcnt(0)")
    a("s_mov_b64 exec, 1")
    a(f"ds_add_u32 v{CTs}, v{VT1} offset:{O_GUCNT}")
    a("s_mov_b64 exec, -1")
    a("s_mov_b32 s8, s32"); a("s_mov_b32 s9, s33"); a(f"s_mov_b32 s10, {1728*1280}"); a("s_mov_b32 s11, 0x20000")
    a("s_lshl_b32 s21, s20, 4")
    a(f"v_lshl_add_u32 v{VT0}, v1, 2, s21")
    a("s_movk_i32 s21, 1280")
    a(f"v_mul_lo_u32 v{VO}, v{VT0}, s21")
    a(f"v_lshl_add_u32 v{VO}, v2, 4, v{VO}")
    a(f"s_mul_i32 s22, s62, {64*1280}")
    def wd_issue(n):
        r, cb = n // 5, n % 5
        a(f"s_add_u32 s21, s22, {r*1280}")
        a(f"buffer_load_dwordx4 v[{W+4*n}:{W+4*n+3}], v{VO}, s[8:11], s21 offen offset:{cb*256} {wflags}")
    for n in range(20):
        if n >= swf: a(f"s_waitcnt vmcnt({swf-1})")
        wd_issue(n)
    lds_wait_ge(f"v{CTs}", O_GUCNT, "4", f"v{VT1}", "s43", "s42")
    a(f"v_lshl_add_u32 v{VT0}, v{VT0}, 2, v{CTs}")
    G0 = 160
    for c in range(4):
        a(f"ds_read_b128 v[{G0+8*c}:{G0+8*c+3}], v{VT0} offset:{O_GUPART + 512*c}")
        a(f"ds_read_b128 v[{G0+8*c+4}:{G0+8*c+7}], v{VT0} offset:{O_GUPART + 512*c + 256}")
    a("s_waitcnt lgkmcnt(0)")
    for e in range(8):
        a(f"v_add_f32 v{G0+e}, v{G0+e}, v{G0+8+e}")
        a(f"v_add_f32 v{G0+16+e}, v{G0+16+e}, v{G0+24+e}")
    for e in range(8): a(f"v_add_f32 v{G0+e}, v{G0+e}, v{G0+16+e}")
    for r in range(4):
        gt, up = G0 + r, G0 + 4 + r
        a(f"v_cvt_pk_bf16_f32 v{VT1}, v{gt}, v{up}")
        a(f"v_lshlrev_b32 v{gt}, 16, v{VT1}")
        a(f"v_and_b32 v{up}, 0xffff0000, v{VT1}")
        a(f"v_max_f32 v{gt}, 0, v{gt}")
        a(f"v_mul_f32 v{gt}, v{gt}, v{up}")
        a(f"v_cvt_pk_bf16_f32 v{gt}, v{gt}, v{gt}")
        a(f"v_and_b32 v{gt}, 0xffff0000, v{gt}")
        a(f"v_mul_f32 v{gt}, v{gt}, v{VG1}")
    for r in range(4):
        A = A0 if r % 2 == 0 else A1
        a(f"v_cvt_pk_bf16_f32 v{VT1}, v{G0+r}, v{G0+r}")
        for q in range(4): a(f"v_and_b32 v{A+q}, v{VT1}, v{MKs+q}")
        for cb in range(5):
            n = 5*r + cb
            if n == 0: a("s_waitcnt vmcnt(0)")
            a(f"v_mfma_f32_16x16x32_bf16 v[{Y+4*cb}:{Y+4*cb+3}], v[{A}:{A+3}], v[{W+4*n}:{W+4*n+3}], v[{Y+4*cb}:{Y+4*cb+3}]")
    a.label("L_s_noffn")
    a("s_mov_b32 s8, s26"); a("s_mov_b32 s9, s27"); a(f"s_mov_b32 s10, {4096*1280}"); a("s_mov_b32 s11, 0x20000")
    a("s_lshl_b32 s21, s20, 5")
    a(f"v_lshl_add_u32 v{VT0}, v1, 2, s21")
    a("s_movk_i32 s21, 1280")
    a(f"v_mul_lo_u32 v{VO}, v{VT0}, s21")
    a(f"v_lshl_add_u32 v{VO}, v2, 4, v{VO}")
    a(f"s_mul_i32 s22, s16, {128*1280}")
    for n in range(40):
        k, r, cb = n // 20, (n // 5) % 4, n % 5
        if n >= swf: a(f"s_waitcnt vmcnt({swf-1})")
        a(f"s_add_u32 s21, s22, {(16*k + r)*1280}")
        a(f"buffer_load_dwordx4 v[{W+4*n}:{W+4*n+3}], v{VO}, s[8:11], s21 offen offset:{cb*256} {wflags}")
    a("s_waitcnt vmcnt(0)")
    stamp(4)
    a("s_cmp_lg_u32 s20, 0")
    a("s_cbranch_scc1 L_s_noarr")
    if static_red is None:
        lds_wait_ge(f"v{CTs}", O_LANDED, str(arr - 10), f"v{VT1}", "s43", "s42", sleep=32)
        lds_wait_ge(f"v{CTs}", O_LANDED, str(arr), f"v{VT1}", "s43", "s42", sleep=2)
        a(f"s_lshl_b32 s21, s17, {cntshift}")
        a(f"v_mov_b32 v{VT2}, s21"); a(f"v_mov_b32 v{VT1}, 1")
        a("s_mov_b64 exec, 1")
        a(f"buffer_atomic_add v{VT1}, v{VT2}, s[68:71], 0 offen sc0")
        a("s_waitcnt vmcnt(0)")
        a(f"ds_write_b32 v{CTs}, v{VT1} offset:{O_LAST}")
        a("s_mov_b64 exec, -1")
    else:
        a(f"s_cmp_eq_u32 s16, {static_red}")
        a("s_cselect_b32 s21, 31, 0")
        a(f"v_mov_b32 v{VT1}, s21")
        a(f"ds_write_b32 v{CTs}, v{VT1} offset:{O_LAST}")
    a("s_waitcnt lgkmcnt(0)")
    a.label("L_s_noarr")
    a("s_load_dwordx2 s[12:13], s[0:1], 80")
    a("s_load_dwordx2 s[76:77], s[0:1], 96")
    a(f"v_lshl_add_u32 v{VT0}, v{VT0}, 2, v{CTs}")
    M0r = 232
    OP = 32
    def scales():
        for c in range(3):
            a(f"ds_read_b64 v[{M0r+2*c}:{M0r+2*c+1}], v{CTs} offset:{O_APART + 1024*c + 512}")
        a("s_waitcnt lgkmcnt(0)")
        a(f"v_max3_f32 v{VT1}, v{M0r}, v{M0r+2}, v{M0r+4}")
        for c in range(3): a(f"v_sub_f32 v{M0r+2*c}, v{M0r+2*c}, v{VT1}")
        for c in range(3): a(f"v_exp_f32 v{M0r+2*c}, v{M0r+2*c}")
        a(f"v_mul_f32 v{VT1}, v{M0r}, v{M0r+1}")
        a(f"v_fma_f32 v{VT1}, v{M0r+2}, v{M0r+3}, v{VT1}")
        a(f"v_fma_f32 v{VT1}, v{M0r+4}, v{M0r+5}, v{VT1}")
        a(f"v_rcp_f32 v{VT1}, v{VT1}")
        a(f"v_mul_f32 v{VT1}, v{VT1}, v{VG}")
        for c in range(3): a(f"v_mul_f32 v{M0r+2*c}, v{M0r+2*c}, v{VT1}")
    a("s_waitcnt lgkmcnt(0)")
    a("s_mul_i32 s21, s17, 1280")
    a("s_add_u32 s12, s12, s21"); a("s_addc_u32 s13, s13, 0"); a("s_mov_b32 s14, 1280"); a("s_mov_b32 s15, 0x20000")
    a(f"s_mul_i32 s21, s18, {YSTRIDE}")
    a("s_add_u32 s76, s76, s21"); a("s_addc_u32 s77, s77, 0"); a("s_mov_b32 s78, 1280"); a("s_mov_b32 s79, 0x20000")
    if earlyml:
        lds_wait_ge(f"v{CTs}", O_LANDED, "498", f"v{VT1}", "s43", "s42", sleep=32)
        lds_wait_ge(f"v{CTs}", O_MLCNT, "3", f"v{VT1}", "s43", "s42", sleep=2)
        scales()
    if sprio: a(f"s_setprio {sprio}")
    a("s_barrier")
    stamp(10)
    for c in range(3):
        for k in range(2):
            d = OP + (c*2 + k)*4
            a(f"ds_read_b128 v[{d}:{d+3}], v{VT0} offset:{O_APART + 1024*c + 64*k}")
    if not earlyml: scales()
    a("s_waitcnt lgkmcnt(0)")
    OV = 240
    AA = [56, 8]
    def prep(n0):
        k, r = n0 >> 2, n0 & 3
        e = OV + n0; A = AA[n0 % 2]
        return [f"v_mul_f32 v{e}, v{OP + k*4 + r}, v{M0r}",
                f"v_fma_f32 v{e}, v{OP + (2+k)*4 + r}, v{M0r+2}, v{e}",
                f"v_fma_f32 v{e}, v{OP + (4+k)*4 + r}, v{M0r+4}, v{e}",
                f"v_cvt_pk_bf16_f32 v{VT1}, v{e}, v{e}"] + [f"v_and_b32 v{A+q}, v{VT1}, v{MKs+q}" for q in range(4)]
    for i_ in prep(0): a(i_)
    for n0 in range(8):
        A = AA[n0 % 2]
        fill = prep(n0 + 1) if n0 < 7 else []
        for cb in range(5):
            n = n0*5 + cb
            a(f"v_mfma_f32_16x16x32_bf16 v[{Y+4*cb}:{Y+4*cb+3}], v[{A}:{A+3}], v[{W+4*n}:{W+4*n+3}], v[{Y+4*cb}:{Y+4*cb+3}]")
            take = {0: 3, 1: 2, 2: 3}.get(cb, 0)
            for i_ in fill[:take]: a(i_)
            fill = fill[take:]
    a("v_lshlrev_b32 v3, 4, v1"); a("v_lshl_add_u32 v3, v2, 5, v3")
    a("s_mul_i32 s21, s20, 2560")
    a(f"v_add_u32 v{VT2}, s21, v3")
    a("s_mov_b32 exec_hi, 0")
    for cb in range(5):
        a(f"ds_write_b128 v{VT2}, v[{Y+4*cb}:{Y+4*cb+3}] offset:{YPART + 512*cb}")
    a("s_mov_b64 exec, -1")
    a("s_waitcnt lgkmcnt(0)")
    stamp(11)
    a("s_barrier")
    stamp(13)
    a("s_cmp_ge_u32 s20, 3")
    a("s_cbranch_scc1 L_end")
    a(f"ds_read_b32 v{VT1}, v{CTs} offset:{O_LAST}")
    a("s_lshl_b32 s21, s20, 10")
    a(f"v_lshl_add_u32 v{VT2}, v0, 4, s21")
    R0 = 64
    for c in range(4):
        a(f"ds_read_b128 v[{R0+4*c}:{R0+4*c+3}], v{VT2} offset:{YPART + 2560*c}")
    a("s_waitcnt lgkmcnt(4)")
    a(f"v_readfirstlane_b32 s22, v{VT1}")
    a("s_cmp_lg_u32 s22, 31")
    a("s_cbranch_scc1 L_pub")
    for c in range(4, 8):
        a(f"ds_read_b128 v[{R0+4*c}:{R0+4*c+3}], v{VT2} offset:{YPART + 2560*c}")
    a(f"v_lshrrev_b32 v{VT2}, 1, v{VT2}")
    a("s_waitcnt lgkmcnt(0)")
    for (x, y) in ((0, 1), (2, 3), (4, 5), (6, 7), (0, 2), (4, 6)):
        a(f"v_pk_add_f32 v[{R0+4*x}:{R0+4*x+1}], v[{R0+4*x}:{R0+4*x+1}], v[{R0+4*y}:{R0+4*y+1}]")
        a(f"v_pk_add_f32 v[{R0+4*x+2}:{R0+4*x+3}], v[{R0+4*x+2}:{R0+4*x+3}], v[{R0+4*y+2}:{R0+4*y+3}]")
    a(f"v_cvt_pk_bf16_f32 v{R0}, v{R0}, v{R0+1}")
    a(f"v_cvt_pk_bf16_f32 v{R0+2}, v{R0+2}, v{R0+3}")
    a(f"v_and_b32 v{R0+1}, 0xffff0000, v{R0}"); a(f"v_lshlrev_b32 v{R0}, 16, v{R0}")
    a(f"v_and_b32 v{R0+3}, 0xffff0000, v{R0+2}"); a(f"v_lshlrev_b32 v{R0+2}, 16, v{R0+2}")
    a(f"v_pk_add_f32 v[{R0}:{R0+1}], v[{R0}:{R0+1}], v[{R0+16}:{R0+17}]")
    a(f"v_pk_add_f32 v[{R0+2}:{R0+3}], v[{R0+2}:{R0+3}], v[{R0+18}:{R0+19}]")
    if perturb:
        for e in range(4): a(f"v_mul_f32 v{R0+e}, {f2u(1.0 + perturb):#x}, v{R0+e}")
    a(f"v_cvt_pk_bf16_f32 v{R0}, v{R0}, v{R0+1}")
    a(f"v_cvt_pk_bf16_f32 v{R0+1}, v{R0+2}, v{R0+3}")
    a(f"buffer_store_dwordx2 v[{R0}:{R0+1}], v{VT2}, s[12:15], 0 offen {outflags}")
    stamp(5)
    a("s_endpgm")
    a.label("L_pub")
    a(f"v_lshrrev_b32 v{VT2}, 1, v{VT2}")
    a("s_waitcnt lgkmcnt(0)")
    for (x, y) in ((0, 1), (2, 3), (0, 2)):
        a(f"v_pk_add_f32 v[{R0+4*x}:{R0+4*x+1}], v[{R0+4*x}:{R0+4*x+1}], v[{R0+4*y}:{R0+4*y+1}]")
        a(f"v_pk_add_f32 v[{R0+4*x+2}:{R0+4*x+3}], v[{R0+4*x+2}:{R0+4*x+3}], v[{R0+4*y+2}:{R0+4*y+3}]")
    a(f"v_cvt_pk_bf16_f32 v{R0}, v{R0}, v{R0+1}")
    a(f"v_cvt_pk_bf16_f32 v{R0+1}, v{R0+2}, v{R0+3}")
    for e in range(2): a(f"v_min_u32 v{R0+e}, -2, v{R0+e}")
    a(f"buffer_store_dwordx2 v[{R0}:{R0+1}], v{VT2}, s[76:79], 0 offen sc1")
    stamp(5)
    a("s_endpgm")

    a.label("L_join")
    if cprio: a("s_setprio 0")
    a(f"v_mov_b32 v1, {CTL}")
    a("s_waitcnt lgkmcnt(0)")
    a("s_barrier")
    a(f"ds_read_b32 v2, v1 offset:{O_LAST}")
    a("s_waitcnt lgkmcnt(0)")
    a("v_readfirstlane_b32 s21, v2")
    a("s_cmp_lg_u32 s21, 31")
    a("s_cbranch_scc1 L_join3")
    a("v_lshrrev_b32 v1, 4, v0"); a("v_and_b32 v2, 15, v0")
    a(f"v_lshlrev_b32 v3, {int(math.log2(YSTRIDE))}, v1"); a("v_lshl_add_u32 v3, v2, 4, v3")
    a("s_lshl_b32 s22, s19, 3")
    for n in range(2):
        a(f"s_add_u32 s23, s22, {4*n}")
        a("v_add_u32 v4, s23, v1")
        a("v_cmp_eq_u32 vcc, s16, v4")
        a("v_mov_b32 v5, 0x40000000")
        a(f"v_cndmask_b32 v{6+n}, v3, v5, vcc")
    masks(8, "v0", "v4", "v5")
    for r in range(4): a(f"v_and_b32 v{8+r}, 0x3f803f80, v{8+r}")
    a(f"s_mov_b32 s27, 0x4000")
    D = 64
    def g_issue(G):
        for n in range(2):
            a(f"s_add_u32 s23, s22, {4*n}"); a(f"s_lshl_b32 s23, s23, {int(math.log2(YSTRIDE))}")
            for cb in range(5):
                d = G + 4*(5*n + cb)
                a(f"buffer_load_dwordx4 v[{d}:{d+3}], v{6+n}, s[40:43], s23 offen offset:{256*cb} sc1")
    def g_check(G, okl):
        a(f"v_max3_u32 v4, v{G}, v{G+1}, v{G+2}")
        a(f"v_max3_u32 v5, v{G+3}, v{G+4}, v{G+5}")
        for e in range(6, 40, 4):
            a(f"v_max3_u32 v4, v4, v{G+e}, v{G+e+1}")
            if e + 3 < 40: a(f"v_max3_u32 v5, v5, v{G+e+2}, v{G+e+3}")
        a("v_max_u32 v4, v4, v5")
        a("v_cmp_eq_u32 vcc, -1, v4")
        a("s_cmp_eq_u64 vcc, 0")
        a(f"s_cbranch_scc1 {okl}")
    def g_sum(G):
        for n in range(2):
            for cb in range(5):
                d = G + 4*(5*n + cb)
                c = "0" if n == 0 else f"v[{D+4*cb}:{D+4*cb+3}]"
                a(f"v_mfma_f32_16x16x32_bf16 v[{D+4*cb}:{D+4*cb+3}], v[8:11], v[{d}:{d+3}], {c}")
    GA, GB = 16, 96
    if pipepoll:
        g_issue(GA)
        a("s_sleep 4")
        g_issue(GB)
        a.label("L_gather")
        a("s_waitcnt vmcnt(10)")
        g_check(GA, "L_gathA")
        g_issue(GA)
        a("s_waitcnt vmcnt(10)")
        g_check(GB, "L_gathB")
        g_issue(GB)
        a("s_sub_u32 s27, s27, 1")
        a("s_cmp_lg_u32 s27, 0")
        a("s_cbranch_scc1 L_gather")
        a.label("L_gathA")
        stamp(12)
        g_sum(GA)
        a("s_branch L_gathered")
        a.label("L_gathB")
        stamp(12)
        g_sum(GB)
        a.label("L_gathered")
    else:
        a.label("L_gather")
        g_issue(GA)
        a("s_waitcnt vmcnt(0)")
        g_check(GA, "L_gathered")
        a("s_sub_u32 s27, s27, 1")
        a("s_cmp_lg_u32 s27, 0")
        a("s_cbranch_scc1 L_gather")
        a.label("L_gathered")
        stamp(12)
        g_sum(GA)
    a("v_lshlrev_b32 v3, 4, v1"); a("v_lshl_add_u32 v3, v2, 5, v3")
    a("s_add_u32 s21, s19, 4")
    a("s_mul_i32 s21, s21, 2560")
    a("v_add_u32 v3, s21, v3")
    a("s_mov_b32 exec_hi, 0")
    for cb in range(5):
        a(f"ds_write_b128 v3, v[{D+4*cb}:{D+4*cb+3}] offset:{YPART + 512*cb}")
    a("s_mov_b64 exec, -1")
    a.label("L_join3")
    a("s_waitcnt lgkmcnt(0)")
    a("s_barrier")
    a.label("L_end")
    a("s_endpgm")

    lines, nfix = a.finish()
    out = []
    out.append(HEADER.rstrip("\n"))
    out.append("; Override launch geometry by editing the next line (default: block=256,")
    out.append(f"; @launch grid=(256,1,1) block=(512,1,1) lds={LDS_BYTES}")
    out.append('.amdgcn_target "amdgcn-amd-amdhsa--gfx950"')
    out.append(".text"); out.append(f".globl {KN}"); out.append(".p2align 8"); out.append(f".type {KN},@function")
    out += [l if (l.endswith(":") or l.startswith(";")) else "    " + l for l in lines]
    out.append('.section .rodata,"a"'); out.append(".p2align 6"); out.append(f".amdhsa_kernel {KN}")
    out.append("  .amdhsa_next_free_vgpr 256"); out.append("  .amdhsa_next_free_sgpr 102"); out.append("  .amdhsa_accum_offset 256")
    out.append("  .amdhsa_group_segment_fixed_size 0"); out.append("  .amdhsa_kernarg_size 104"); out.append("  .amdhsa_user_sgpr_count 2")
    out.append("  .amdhsa_user_sgpr_kernarg_segment_ptr 1"); out.append("  .amdhsa_system_sgpr_workgroup_id_x 1"); out.append(".end_amdhsa_kernel")
    return "\n".join(out) + "\n", nfix

if __name__ == "__main__":
    kw = eval("dict(%s)" % (sys.argv[2] if len(sys.argv) > 2 else ""))
    s, n = gen(**kw)
    open(sys.argv[1], "w").write(s)
    print("nops inserted:", n, "bytes:", len(s))
```
